```python
import torch

def _softmax(x, axis=-1):
    return torch.softmax(x, dim=axis)

def _gelu(x):
    return torch.nn.functional.gelu(x, approximate='tanh')

def _silu(x):
    return torch.nn.functional.silu(x)

def _sigmoid(x):
    return torch.sigmoid(x)

def _layernorm(x, axis=-1, eps=1e-05):
    m = x.mean(dim=axis, keepdim=True)
    v = x.var(dim=axis, keepdim=True, unbiased=False)
    return (x - m) / torch.sqrt(v + eps)

def _scatter_add(tgt, idx, src, axis=0):
    return tgt.clone().index_add_(axis, idx, src)

def _segment_sum(src, seg, n):
    out = torch.zeros((n,) + src.shape[1:], dtype=src.dtype)
    return out.index_add_(0, seg, src)

def _pad(x, pw):
    flat = tuple((v for pair in reversed(pw) for v in pair))
    return torch.nn.functional.pad(x, flat)
kernel_name = 'adaLN_cond__mha_block_cached__glu_gated_bilinear__prompt'

def setup_inputs():

    _w = lambda a: (lambda t: t.to(torch.bfloat16) if t.is_floating_point() else t)(torch.as_tensor(a))

    def _A_setup():
        B, Sq, D = (1, 2048, 512)
        H, Sk, Dh = (32, 2048, 128)
        return {'x': _w((lambda *s: torch.randn(*s, dtype=torch.bfloat16) * 0.1)(B, Sq, D)), 'k_cache': _w((lambda *s: torch.randn(*s, dtype=torch.bfloat16) * 0.8)(B, H, Sk, Dh)), 'v_cache': _w((lambda *s: torch.randn(*s, dtype=torch.bfloat16) * 3.2)(B, H, Sk, Dh)), 'wq': _w((lambda *s: torch.randn(*s, dtype=torch.bfloat16) * 0.8)(D, H * Dh) * D ** (-0.5)), 'wo': _w((lambda *s: torch.randn(*s, dtype=torch.bfloat16) * 3.2)(H * Dh, D) * (H * Dh) ** (-0.5))}
    _A_in = _A_setup()

    def _B_setup():
        B, S, D, F = (1, 2048, 512, 1792)
        return {'x': _w((lambda *s: torch.randn(*s, dtype=torch.bfloat16) * 0.1)(B, S, D)), 'w_gate': _w((lambda *s: torch.randn(*s, dtype=torch.bfloat16) * 3.2)(D, F) * D ** (-0.5)), 'w_up': _w((lambda *s: torch.randn(*s, dtype=torch.bfloat16) * 3.2)(D, F) * D ** (-0.5)), 'w_down': _w((lambda *s: torch.randn(*s, dtype=torch.bfloat16) * 3.2)(F, D) * F ** (-0.5))}
    _B_in = _B_setup()
    return {'A_x': _A_in['x'], 'A_k_cache': _A_in['k_cache'], 'A_v_cache': _A_in['v_cache'], 'A_wq': _A_in['wq'], 'A_wo': _A_in['wo'], 'B_x': _B_in['x'], 'B_w_gate': _B_in['w_gate'], 'B_w_up': _B_in['w_up'], 'B_w_down': _B_in['w_down'], 'c': _w((lambda *s: torch.randn(*s, dtype=torch.bfloat16) * 0.8)(1, 512) * 8.0), 'w_mod': _w((lambda *s: torch.randn(*s, dtype=torch.bfloat16) * 0.8)(512, 6 * 512) * 512 ** (-0.5) * 8.0)}

def reference(A_x, A_k_cache, A_v_cache, A_wq, A_wo, B_x, B_w_gate, B_w_up, B_w_down, c, w_mod):

    def _A_ref(x, k_cache, v_cache, wq, wo):
        B, Sq, D = x.shape
        H, Dh = (32, 128)
        q = (lambda x, *d: x.permute(*d))((x @ wq).reshape(B, Sq, H, Dh), 0, 2, 1, 3)
        scores = torch.einsum('bhqd,bhkd->bhqk', q, k_cache) * Dh ** (-0.5)
        p = _softmax(scores, axis=-1)
        o = torch.einsum('bhqk,bhkd->bhqd', p, v_cache)
        return (lambda x, *d: x.permute(*d))(o, 0, 2, 1, 3).reshape(B, Sq, H * Dh) @ wo

    def _B_ref(x, w_gate, w_up, w_down):
        g = torch.einsum('bsd,df->bsf', x, w_gate)
        u = torch.einsum('bsd,df->bsf', x, w_up)
        h = g * u
        return torch.einsum('bsf,fd->bsd', h, w_down)
    x = A_x
    mod = (_silu(c) @ w_mod).reshape(c.shape[0], 6, 1, -1)
    sa, ca, ga, sb, cb, gb = (mod[:, 0].clone(), mod[:, 1].clone(), mod[:, 2].clone(), mod[:, 3].clone(), mod[:, 4].clone(), mod[:, 5].clone())
    h = _layernorm(x, axis=-1) * (1 + ca) + sa
    x = x + ga * _A_ref(h, A_k_cache, A_v_cache, A_wq, A_wo)
    h = _layernorm(x, axis=-1) * (1 + cb) + sb
    x = x + gb * _B_ref(h, B_w_gate, B_w_up, B_w_down)
    return x
```

```python
import re

TRANS = ('v_exp_f32', 'v_log_f32', 'v_rcp_f32', 'v_rsq_f32', 'v_sqrt_f32', 'v_sin_f32', 'v_cos_f32',
         'v_rcp_iflag_f32')
_REG = re.compile(r'^(-|\|)?(abs\()?([vas])(\d+)\)?\|?$')
_RNG = re.compile(r'^(-|\|)?([vas])\[(\d+):(\d+)\]$')


def regs_of(op):
    op = op.strip()
    m = _RNG.match(op)
    if m:
        return [m.group(2) + str(i) for i in range(int(m.group(3)), int(m.group(4)) + 1)]
    m = _REG.match(op)
    if m:
        return [m.group(3) + m.group(4)]
    if op in ('vcc', 'exec', 'm0', 'scc'):
        return [op]
    if op in ('vcc_lo', 'vcc_hi'):
        return ['vcc']
    if op in ('exec_lo', 'exec_hi'):
        return ['exec']
    return []


class Inst:
    __slots__ = ('text', 'mn', 'kind', 'reads', 'writes', 'a', 'b', 'c', 'passes', 'comment', 'wait', 'nstates', 'tag')

    def __init__(self, text, tag=None):
        self.text = text
        self.tag = tag
        t = text.split(';')[0].strip()
        parts = t.split(None, 1)
        mn = parts[0]
        self.mn = mn
        rest = parts[1] if len(parts) > 1 else ''
        ops = [o.strip() for o in rest.split(',')] if rest else []
        mods = ''
        fixed = []
        for o in ops:
            fixed.append(o)
        ops2 = []
        depth = 0
        cur = ''
        for ch in rest:
            if ch == '[':
                depth += 1
            if ch == ']':
                depth -= 1
            if ch == ',' and depth == 0:
                ops2.append(cur.strip())
                cur = ''
            else:
                cur += ch
        if cur.strip():
            ops2.append(cur.strip())
        ops = ops2
        if ops:
            last = ops[-1].split()
            ops[-1] = last[0]
            mods = ' '.join(last[1:])
        self.reads = set()
        self.writes = set()
        self.a = self.b = self.c = ()
        self.passes = 0
        self.wait = None
        self.nstates = 1
        R = lambda lst: [r for o in lst for r in regs_of(o)]
        base = re.sub(r'_(e32|e64|dpp|sdwa)$', '', mn)
        if mn.startswith('v_mfma'):
            self.kind = 'mfma'
            self.writes = set(regs_of(ops[0]))
            self.a, self.b, self.c = tuple(regs_of(ops[1])), tuple(regs_of(ops[2])), tuple(regs_of(ops[3]))
            self.reads = set(self.a) | set(self.b) | set(self.c)
            self.passes = 8 if '32x32' in mn else 4
        elif mn.startswith('ds_read') or mn.startswith('ds_bpermute') or mn.startswith('ds_swizzle'):
            self.kind = 'dsread'
            self.writes = set(regs_of(ops[0]))
            self.reads = set(R(ops[1:]))
        elif mn.startswith('ds_'):
            self.kind = 'dswrite'
            self.reads = set(R(ops))
        elif mn.startswith('buffer_load') or mn.startswith('global_load'):
            if ' lds' in (' ' + mods) or '_lds_' in mn:
                self.kind = 'dma'
                self.reads = set(R(ops)) | {'m0'}
            else:
                self.kind = 'vload'
                self.writes = set(regs_of(ops[0]))
                self.reads = set(R(ops[1:]))
        elif mn.startswith('buffer_store') or mn.startswith('global_store'):
            self.kind = 'vstore'
            self.reads = set(R(ops))
            self.a = tuple(regs_of(ops[0] if mn.startswith('buffer') else ops[1]))
        elif mn.startswith('buffer_atomic') or mn.startswith('global_atomic'):
            self.kind = 'vstore'
            self.reads = set(R(ops))
            if 'sc0' in mods:
                self.kind = 'vload'
                self.writes = set(regs_of(ops[0]))
        elif mn in ('buffer_wbl2', 'buffer_inv'):
            self.kind = 'vstore'
        elif mn.startswith('s_load') or mn.startswith('s_buffer_load') or mn in ('s_memtime', 's_memrealtime'):
            self.kind = 'smem'
            self.writes = set(regs_of(ops[0]))
            self.reads = set(R(ops[1:]))
        elif mn == 's_waitcnt':
            self.kind = 'wait'
            w = {}
            for k, v in re.findall(r'(vmcnt|lgkmcnt|expcnt)\((\d+)\)', rest):
                w[k] = int(v)
            self.wait = w
        elif mn == 's_nop':
            self.kind = 'nop'
            self.nstates = int(ops[0], 0) + 1
        elif mn in ('s_barrier', 's_endpgm', 's_setprio', 's_sleep', 's_branch') or mn.startswith('s_cbranch'):
            self.kind = 'sctl'
            if mn.startswith('s_cbranch_scc'):
                self.reads = {'scc'}
            if mn.startswith('s_cbranch_vcc'):
                self.reads = {'vcc'}
            if mn.startswith('s_cbranch_exec'):
                self.reads = {'exec'}
        elif mn.startswith('s_cmp'):
            self.kind = 'salu'
            self.reads = set(R(ops))
            self.writes = {'scc'}
        elif mn.startswith('s_'):
            self.kind = 'salu'
            self.writes = set(regs_of(ops[0]))
            self.reads = set(R(ops[1:]))
            if 'saveexec' in mn:
                self.writes |= {'exec'}
                self.reads |= {'exec'}
            if mn.startswith('s_cselect') or mn.startswith('s_addc') or mn.startswith('s_subb'):
                self.reads |= {'scc'}
            if mn in ('s_addk_i32', 's_mulk_i32'):
                self.reads |= self.writes
        elif mn.startswith('v_'):
            self.kind = 'trans' if base in TRANS else 'valu'
            if base.startswith('v_permlane') and 'swap' in base:
                self.writes = set(R(ops[:2]))
                self.reads = set(R(ops[:2]))
            elif base in ('v_add_co_u32', 'v_sub_co_u32', 'v_addc_co_u32', 'v_subb_co_u32', 'v_div_scale_f32'):
                self.writes = set(R(ops[:2]))
                self.reads = set(R(ops[2:]))
            elif base == 'v_nop':
                pass
            else:
                self.writes = set(regs_of(ops[0]))
                self.reads = set(R(ops[1:]))
                if base.startswith('v_fmac') or base.startswith('v_dot2c') or base.startswith('v_pk_fmac') \
                        or base == 'v_writelane_b32' or mn.endswith('_dpp'):
                    self.reads |= self.writes
                if base.startswith('v_cmpx'):
                    self.writes |= {'exec'}
        else:
            raise ValueError('unknown instruction: ' + text)

    def is_valu(self):
        return self.kind in ('valu', 'trans')


class Prog:
    def __init__(self):
        self.items = []

    def I(self, text, tag=None):
        for ln in text.strip().split('\n'):
            ln = ln.strip()
            if not ln or ln.startswith(';'):
                continue
            if ln.endswith(':'):
                self.items.append(ln)
            elif ln.startswith('.'):
                self.items.append(ln)
            else:
                self.items.append(Inst(ln, tag))

    def raw(self, s):
        self.items.append(s)

    def label(self, name):
        self.items.append(name + ':')

    def c(self, s):
        self.items.append('; ' + s)

    def extend(self, other):
        self.items.extend(other.items if isinstance(other, Prog) else other)

    def text(self):
        out = []
        for it in self.items:
            if isinstance(it, Inst):
                out.append('    ' + it.text)
            else:
                out.append(it)
        return '\n'.join(out) + '\n'

    def insts(self):
        return [i for i in self.items if isinstance(i, Inst)]


def check_trace(insts, name='', verbose=True):
    errs = []
    n = len(insts)
    MAXD = 20

    def dist(i, j):
        return sum(insts[k].nstates for k in range(i + 1, j))

    def err(i, j, need, why):
        errs.append('%s: hazard [%s] need %d have %d\n    P: %s\n    C: %s' % (
            name, why, need, dist(i, j), insts[i].text, insts[j].text))

    for j in range(n):
        c = insts[j]
        d = 0
        i = j - 1
        while i >= 0 and d < MAXD:
            p = insts[i]
            pw = p.writes
            if p.is_valu():
                vw = {r for r in pw if r[0] in 'va' and r not in ('vcc',)}
                sw = {r for r in pw if r[0] == 's' or r == 'vcc'}
                if c.kind == 'mfma' and vw & c.reads and d < 2:
                    err(i, j, 2, 'valu->mfma')
                if p.kind == 'trans' and c.kind == 'valu' and vw & c.reads and d < 1:
                    err(i, j, 1, 'trans->valu')
                if c.is_valu() and c.mn.startswith('v_permlane') and vw & c.reads and d < 2:
                    err(i, j, 2, 'valu->permlane')
                if c.is_valu() and c.mn.endswith('_dpp') and vw & c.reads and d < 2:
                    err(i, j, 2, 'valu->dpp')
                if c.mn.startswith('v_readlane') or c.mn.startswith('v_readfirstlane'):
                    if vw & c.reads and d < 1:
                        err(i, j, 1, 'valu->readlane')
                if sw & c.reads:
                    if c.kind in ('vload', 'vstore', 'dma') and d < 5:
                        err(i, j, 5, 'valu sgpr->vmem')
                    if c.is_valu() and d < 2:
                        err(i, j, 2, 'valu sgpr->valu')
                    if c.mn.startswith('v_readlane') and d < 4:
                        err(i, j, 4, 'valu sgpr->lanesel')
                if 'exec' in pw:
                    if c.kind == 'mfma' and d < 4:
                        err(i, j, 4, 'valu exec->mfma')
                    if (c.mn.endswith('_dpp') and d < 5) or (c.mn.startswith('v_permlane') and d < 4):
                        err(i, j, 5, 'valu exec->dpp/permlane')
            if p.kind == 'mfma':
                full = {4: 8, 8: 12}[p.passes]
                part = {4: 6, 8: 10}[p.passes]
                war = {4: 3, 8: 7}[p.passes]
                if c.kind == 'mfma':
                    if pw & (set(c.a) | set(c.b)) and d < full:
                        err(i, j, full, 'mfma D->mfma A/B')
                    if pw & set(c.c):
                        if not (set(c.c) == pw and c.passes == p.passes) and d < part:
                            err(i, j, part, 'mfma D->mfma C partial')
                    elif pw & c.writes and d < part:
                        err(i, j, part, 'mfma D->mfma D WAW (conservative)')
                elif c.is_valu():
                    if pw & (c.reads | c.writes) and d < full:
                        err(i, j, full, 'mfma D->valu')
                    if set(p.c) & c.writes and d < war:
                        err(i, j, war, 'mfma C read->valu write')
                elif c.kind in ('dsread', 'dswrite', 'vload', 'vstore', 'dma'):
                    if pw & (c.reads | c.writes) and d < full:
                        err(i, j, full, 'mfma D->mem')
            if p.kind == 'salu' and 'm0' in pw and c.kind == 'dma' and d < 1:
                err(i, j, 1, 'm0->dma')
            if p.kind == 'vstore' and len(p.a) >= 3 and set(p.a) & c.writes:
                if c.is_valu() and d < 2:
                    err(i, j, 2, 'store data WAR')
                elif d < 1:
                    err(i, j, 1, 'store data WAR')
            d += p.nstates
            i -= 1
    vm = []
    lg = []
    for j, c in enumerate(insts):
        if c.kind == 'wait':
            if 'vmcnt' in c.wait:
                k = c.wait['vmcnt']
                vm = vm[len(vm) - k:] if k < len(vm) else vm
                if k == 0:
                    vm = []
            if 'lgkmcnt' in c.wait:
                k = c.wait['lgkmcnt']
                if any(insts[x].kind == 'smem' for x in lg) and k != 0:
                    pass
                else:
                    lg = lg[len(lg) - k:] if k < len(lg) else lg
                    if k == 0:
                        lg = []
            continue
        touched = c.reads | c.writes
        for q in (vm, lg):
            for x in q:
                if (insts[x].writes & touched) - ({'v112'} if c.kind == 'vload' else set()):
                    errs.append('%s: use before wait\n    L: %s\n    C: %s' % (name, insts[x].text, c.text))
        if c.kind in ('vload', 'vstore', 'dma'):
            vm.append(j)
            if len(vm) > 63:
                errs.append('%s: vmcnt overflow at %s' % (name, c.text))
        if c.kind in ('dsread', 'dswrite', 'smem'):
            lg.append(j)
    if verbose:
        for e in errs[:6]:
            print(e)
        print('check %s: %d insts, %d errors' % (name, n, len(errs)))
    return errs


class VmTracker:
    def __init__(self):
        self.n = 0
        self.tags = {}

    def issue(self, tag):
        self.n += 1
        self.tags[tag] = self.n

    def wait_for(self, tag):
        return self.n - self.tags[tag]
```

```python
from common import *

KADDR = 1
VADDR = 9
VOFFK = 13
VOFFV = 17
LSUM = 18
MTRUE = 20
TMP = 22
QREG = 32
VOFFW = 96
VOFFH = 100
VOFFO = 101
T2 = 104
SREG = 128
PREG = 192
NEGM = 224
KF = 128
VF = 160

S_K, S_V, S_W, S_H, S_O = 4, 8, 12, 16, 20
S_KOFF, S_VOFF, S_WB, S_CNT, S_FLAG = 24, 25, 26, 27, 28
S_HOFF, S_WOFF = 29, 30
S_T = 32


def Q(qt, s): return QREG + 32 * qt + 4 * s
def S(b, qt): return SREG + 32 * b + 16 * qt
def P(b, qt, ks): return PREG + 16 * b + 8 * qt + 4 * ks
def QACC(dt, qt): return 128 + 32 * dt + 16 * qt
def O(dt, qt): return 32 * dt + 16 * qt


def hslot(H):
    s = H % 48
    return 4 * s if s < 32 else 192 + 4 * (s - 32)


def kread(slot, kt, s):
    return lambda st: st.I('ds_read_b128 %s, v%d offset:%d' % (ar(KF + 4 * s, 4), KADDR + s, slot * 16384 + kt * 8192),
                           ('K', s))


def vread(dst, slot, rowoff, dt, n, tag):
    return lambda st: st.I('ds_read_b64_tr_b16 %s, v%d offset:%d' % (
        ar(dst + 2 * n, 2), VADDR + dt, slot * 16384 + rowoff * 256 + n * 2048), tag)


def dma_k(slot, i, tag):
    def f(st):
        if i == 0:
            st.I('s_add_u32 m0, s%d, %d' % (S_WB, slot * 16384))
            st.I('s_nop 0')
        st.I('buffer_load_dwordx4 v%d, s[%d:%d], s%d offen offset:%d lds' % (VOFFK + i, S_K, S_K + 3, S_KOFF, i * 1024), tag)
        if i == 3:
            st.I('s_add_u32 s%d, s%d, 16384' % (S_KOFF, S_KOFF))
    return f


def gen_attn(opts):
    name = opts.get('name', 'attn_kernel')
    LEAD = opts.get('lead', 12)
    BIAS = opts.get('bias', 100.0)
    M16 = 'v_mfma_f32_16x16x32_bf16'
    EXP0 = opts.get('exp0', 18)
    st = Stream()
    p = st.p
    I = st.I
    p.label(name)
    I('s_cmp_ge_u32 s2, 256')
    I('s_cbranch_scc1 L_attn_end')
    for d, off in ((S_K, 8), (S_V, 16), (S_W, 24), (S_H, 104)):
        I('s_load_dwordx2 s[%d:%d], s[0:1], %d' % (d, d + 1, off))
    stamps_begin(st, opts)
    I('s_and_b32 s32, s2, 6')
    I('s_lshl_b32 s32, s32, 2')
    I('s_lshr_b32 s33, s2, 5')
    I('s_add_u32 s32, s32, s33')
    I('s_lshr_b32 s33, s2, 3')
    I('s_and_b32 s33, s33, 3')
    I('s_and_b32 s34, s2, 1')
    I('s_lshl_b32 s34, s34, 2')
    I('s_add_u32 s33, s33, s34')
    I('v_and_b32 v22, 63, v0')
    I('v_lshrrev_b32 v23, 6, v0')
    I('s_nop 0')
    I('v_readfirstlane_b32 s34, v23')
    I('v_lshrrev_b32 v24, 5, v22')
    I('v_and_b32 v25, 15, v22')
    I('v_lshrrev_b32 v26, 4, v22')
    I('v_and_b32 v27, 31, v22')
    I('v_lshlrev_b32 v27, 8, v27')
    I('v_xor_b32 v28, v24, v25')
    I('v_lshl_add_u32 v%d, v28, 4, v27' % KADDR)
    for s in range(1, 8):
        I('v_xor_b32 v%d, %d, v%d' % (KADDR + s, s << 5, KADDR))
    I('v_lshrrev_b32 v27, 2, v25')
    I('v_lshl_add_u32 v28, v24, 2, v27')
    I('v_lshlrev_b32 v28, 8, v28')
    I('v_lshl_add_u32 v28, v27, 6, v28')
    I('v_and_b32 v29, 1, v26')
    I('v_lshl_add_u32 v28, v29, 5, v28')
    I('v_and_b32 v29, 1, v22')
    I('v_lshl_add_u32 v28, v29, 4, v28')
    I('v_bfe_u32 v29, v22, 1, 1')
    I('v_lshl_add_u32 v28, v29, 3, v28')
    I('v_add_u32 v%d, 0x10000, v28' % VADDR)
    for dt in range(1, 4):
        I('v_xor_b32 v%d, %d, v%d' % (VADDR + dt, dt << 6, VADDR))
    I('v_lshlrev_b32 v27, 12, v23')
    I('v_lshl_add_u32 v27, v26, 8, v27')
    I('v_xor_b32 v28, v25, v26')
    I('v_lshl_add_u32 v%d, v28, 4, v27' % VOFFK)
    for i in range(1, 4):
        I('v_xor_b32 v%d, %d, v%d' % (VOFFK + i, i << 6, VOFFK))
    I('v_lshlrev_b32 v28, 2, v26')
    I('v_xor_b32 v28, v25, v28')
    I('v_lshl_add_u32 v%d, v28, 4, v27' % VOFFV)
    I('v_lshl_add_u32 v29, v23, 4, v26')
    I('v_lshlrev_b32 v29, 13, v29')
    I('v_lshl_add_u32 v%d, v28, 4, v29' % VOFFW)
    for i in range(1, 4):
        I('v_add_u32 v%d, %d, v%d' % (VOFFW + i, i * (4 * 8192 - 1024), VOFFW))
    I('v_lshlrev_b32 v29, 16, v23')
    I('v_lshl_add_u32 v%d, v22, 4, v29' % VOFFH)
    I('v_lshlrev_b32 v29, 19, v23')
    I('v_lshl_add_u32 v%d, v22, 4, v29' % VOFFO)
    I('s_lshl_b32 s%d, s34, 12' % S_WB)
    I('s_waitcnt lgkmcnt(0)')
    I('s_lshl_b32 s35, s32, 19')
    for d in (S_K, S_V):
        I('s_add_u32 s%d, s%d, s35' % (d, d))
        I('s_addc_u32 s%d, s%d, 0' % (d + 1, d + 1))
        I('s_mov_b32 s%d, 524288' % (d + 2))
        I('s_mov_b32 s%d, 0x20000' % (d + 3))
    I('s_lshl_b32 s35, s32, 8')
    I('s_add_u32 s%d, s%d, s35' % (S_W, S_W))
    I('s_addc_u32 s%d, s%d, 0' % (S_W + 1, S_W + 1))
    I('s_sub_u32 s%d, 4194304, s35' % (S_W + 2))
    I('s_mov_b32 s%d, 0x20000' % (S_W + 3))
    I('s_lshl_b32 s35, s33, 21')
    I('s_lshl_b32 s31, s32, 13')
    I('s_add_u32 s35, s35, s31')
    I('s_add_u32 s35, s35, %d' % WS_O)
    I('s_add_u32 s%d, s%d, s35' % (S_O, S_H))
    I('s_addc_u32 s%d, s%d, 0' % (S_O + 1, S_H + 1))
    I('s_mov_b32 s%d, %d' % (S_O + 2, 8 * 262144))
    I('s_mov_b32 s%d, 0x20000' % (S_O + 3))
    I('s_lshl_b32 s35, s33, 18')
    I('s_add_u32 s35, s35, %d' % WS_H)
    I('s_add_u32 s%d, s%d, s35' % (S_H, S_H))
    I('s_addc_u32 s%d, s%d, 0' % (S_H + 1, S_H + 1))
    I('s_mov_b32 s%d, %d' % (S_H + 2, 8 * 32768))
    I('s_mov_b32 s%d, 0x20000' % (S_H + 3))
    I('s_mov_b32 s%d, 0' % S_KOFF)
    I('s_mov_b32 s%d, 0' % S_VOFF)
    I('s_mov_b32 s%d, 0' % S_WOFF)
    I('s_mov_b32 s%d, 0' % S_FLAG)
    I('s_mov_b32 s%d, 0' % S_HOFF)
    I('s_mov_b32 s31, 32768')

    def dma_w(c, i):
        def f(st):
            if i == 0:
                st.I('s_add_u32 m0, s%d, %d' % (S_WB, 65536 + (c % 4) * 16384))
                st.I('s_nop 0')
            st.I('buffer_load_dwordx4 v%d, s[%d:%d], s%d offen offset:%d lds' % (VOFFW + i, S_W, S_W + 3, S_WOFF, i * 1024),
                 ('W', c))
            if i == 3:
                st.I('s_add_u32 s%d, s%d, %d' % (S_WOFF, S_WOFF, 64 * 8192))
        return f

    def dma_v(t, i):
        def f(st):
            if i == 0:
                st.I('s_add_u32 m0, s%d, %d' % (S_WB, 65536 + (t % 4) * 16384))
                st.I('s_nop 0')
            st.I('buffer_load_dwordx4 v%d, s[%d:%d], s%d offen offset:%d lds' % (VOFFV, S_V, S_V + 3, S_VOFF, i * 1024),
                 ('V', t))
            if i == 3:
                st.I('s_add_u32 s%d, s%d, 16384' % (S_VOFF, S_VOFF))
        return f

    def hload(c, ks, qt):
        H = c * 8 + ks * 2 + qt

        def f(st):
            st.I('buffer_load_dwordx4 %s, v%d, s[%d:%d], s%d offen offset:%d' % (
                ar(hslot(H), 4), VOFFH, S_H, S_H + 3, 31 if qt else S_HOFF, ks * 1024), ('H', H))
            if ks == 3 and qt == 1:
                st.I('s_add_u32 s%d, s%d, 4096' % (S_HOFF, S_HOFF))
                st.I('s_add_u32 s31, s31, 4096')
        return f

    NPRE = opts.get('npre', 2)
    stamp(st, 7, opts)
    for c in range(NPRE):
        for i in range(4):
            dma_w(c, i)(st)
        for ks in range(4):
            for qt in range(2):
                hload(c, ks, qt)(st)
    stamp(st, 8, opts)
    sc = Sched()
    frags = []
    for c in range(8):
        if c < 7:
            frags += [(c, ks, dt) for ks in range(4) for dt in range(4)]
        else:
            frags += [(c, ks, dt) for dt in range(4) for ks in range(4)]
    for F, (c, ks, dt) in enumerate(frags):
        dst = 128 + 4 * (F % 16)
        for n in range(2):
            sc.add(2 * F - LEAD + n, vread(dst, c % 4, ks * 16, dt, n, ('WF', F)), prio=6)
    for c in range(8):
        def bar(st, c=c):
            st.need(vm=('W', c))
            if c == 0:
                stamp(st, 9, opts)
            st.I('s_barrier')
        sc.add(32 * c - LEAD, bar, prio=0)
    for c in range(8):
        g0 = 32 * c - LEAD + 1
        t = c + 2
        items = []
        if t >= NPRE or t >= 8:
            items += [dma_w(t, i) if t < 8 else dma_v(t - 8, i) for i in range(4)]
        if NPRE <= t < 8:
            items += [hload(t, ks, qt) for ks in range(4) for qt in range(2)]
        if c in (5, 6, 7):
            items += [dma_k(c - 5, i, ('K', c - 5)) for i in range(4)]
        for k, it in enumerate(items):
            sc.add(max(g0 + 2 * k, -LEAD + 1), it, prio=7)
    for dt in range(4):
        k = 0
        for qt in range(2):
            for t in range(2):
                for d in range(4):
                    src = QACC(dt, qt) + 8 * t + 2 * d
                    dstq = Q(qt, 2 * dt + t) + d
                    sc.add(224 + 8 * dt + 11 + k // 2,
                           (lambda s_, a=dstq, b=src: s_.I('v_cvt_pk_bf16_f32 v%d, v%d, v%d' % (a, b, b + 1))), prio=4)
                    k += 1
    def bark0(st):
        st.need(vm=('K', 0))
        st.I('s_barrier')
    sc.add(242, bark0, prio=0)
    for s in range(8):
        sc.add(242 + s, kread(0, 0, s), prio=6)
    sc.flush_upto(st, -1)
    stamp(st, 1, opts)
    for F, (c, ks, dt) in enumerate(frags):
        for qt in range(2):
            g = 2 * F + qt
            if qt == 0 and F % 4 == 0:
                st.need(lg=('WF', min(F + 3, 127)) if opts.get('wgroup', True) else ('WF', F))
            st.need(lg=('WF', F))
            H = c * 8 + ks * 2 + qt
            st.need(vm=('H', H))
            acc = QACC(dt, qt)
            first = (c == 0 and ks == 0)
            I('%s %s, %s, %s, %s' % (MF, vr(acc, 16), ar(128 + 4 * (F % 16), 4), ar(hslot(H), 4),
                                    '0' if first else vr(acc, 16)))
            if g == 255:
                sc.flush_upto(st, 257)
                I('s_nop 7')
                sc.flush_upto(st, 300)
            else:
                for fn in sc.pop(g):
                    fn(st)
    assert not sc.fill
    stamp(st, 2, opts)
    I('s_nop 1')
    p.label('L_attn_first')
    st.mark('first')
    I('v_mov_b32 v%d, 0' % LSUM)
    I('v_mov_b32 v%d, 0' % (LSUM + 1))
    sc = Sched()
    def G(u): return 32 * (u - 1)
    NU = 64

    def softmax(u):
        b = u % 2
        for e in range(32):
            blk = e // 8
            qt, ks = blk % 2, blk // 2
            r = S(b, qt) + 8 * ks + e % 8
            g = G(u) + EXP0 + e
            if opts.get('noexp') and u > 1:
                continue
            sc.add(g, (lambda s_, r=r: s_.I('v_exp_f32 v%d, v%d' % (r, r))), prio=2)
            if not opts.get('noadd'):
              sc.add(g + 1, (lambda s_, r=r, qt=qt: s_.I('v_add_f32 v%d, v%d, v%d' % (LSUM + qt, LSUM + qt, r))), prio=3)
            if e % 2:
                d = P(b, qt, ks) + (e % 8) // 2
                sc.add(g + 1, (lambda s_, r=r, d=d: s_.I('v_cvt_pk_bf16_f32 v%d, v%d, v%d' % (d, r - 1, r))), prio=4)

    KG = opts.get('kgaps', [1, 3, 5, 7, 9, 11, 12, 13])
    DG = opts.get('dgaps', [0, 4, 8, 12])
    for u in range(NU):
        softmax(u)
        t, kt = u // 2, u % 2
        for f in range(8):
            ks, dt = f // 4, f % 4
            for n in range(2):
                sc.add(G(u) + 32 + 2 * f + n, vread(VF + 4 * f, t % 4, kt * 32 + ks * 16, dt, n, ('VF', f)), prio=6)
        if u >= 2:
            for s in range(8):
                sc.add(G(u) - 16 + KG[s], kread(t % 4, kt, s), prio=6)
    for s in range(8):
        sc.add(-16 + 2 * s + 1, kread(0, 1, s), prio=6)
    for j in range(32):
        def bar(st, j=j):
            if j + 1 < 32:
                st.need(vm=('K', j + 1))
            st.need(vm=('V', j))
            st.I('s_barrier')
        sc.add(64 * j - 1, bar, prio=8)
        if j + 2 < 32:
            for i in range(4):
                sc.add(64 * j + 16 + DG[i], dma_v(j + 2, i), prio=7)
        if j + 3 < 32:
            for i in range(4):
                sc.add(64 * j + 48 + DG[i], dma_k((j + 3) % 4, i, ('K', j + 3)), prio=7)

    def qk(u, g0, raw=False, extra=None):
        b = u % 2
        for s in range(8):
            for qt in range(2):
                g = g0 + 2 * s + qt
                if qt == 0 and s in (0, 4):
                    st.need(lg=('K', s + 3))
                st.need(lg=('K', s))
                c = vr(S(b, qt), 16) if s else ('0' if raw else vr(NEGM + 16 * qt, 16))
                fl = (extra.get(2 * s + qt, []) if extra else []) + sc.pop(g)
                if opts.get('fake16'):
                    for h in range(2):
                        d = S(b, qt) + 4 * ((s % 2) * 2 + h)
                        c = vr(d, 4) if s > 1 else ('0' if raw else vr(NEGM + 16 * qt, 4))
                        I('%s %s, %s, %s, %s' % (M16, vr(d, 4), ar(KF + 4 * s, 4), vr(Q(qt, s ^ h), 4), c))
                        n = 1 if h == 0 else 99
                        for fn in fl[:n]:
                            fn(st)
                        fl = fl[n:]
                else:
                    I('%s %s, %s, %s, %s' % (MF, vr(S(b, qt), 16), ar(KF + 4 * s, 4), vr(Q(qt, s), 4), c))
                    for fn in fl:
                        fn(st)

    def pv(u, g0):
        b = u % 2
        for f in range(8):
            ks, dt = f // 4, f % 4
            for qt in range(2):
                g = g0 + 2 * f + qt
                if qt == 0 and f in (0, 4):
                    st.need(lg=('VF', f + 3))
                st.need(lg=('VF', f))
                c = '0' if (u == 0 and ks == 0) else ar(O(dt, qt), 16)
                fl = sc.pop(g)
                if opts.get('fake16'):
                    for h in range(2):
                        d = O(dt, qt) + 4 * (ks * 2 + h)
                        c = '0' if u == 0 else ar(d, 4)
                        I('%s %s, %s, %s, %s' % (M16, ar(d, 4), ar(VF + 4 * f, 4), vr(P(b, qt ^ h, ks), 4), c))
                        n = 1 if h == 0 else 99
                        for fn in fl[:n]:
                            fn(st)
                        fl = fl[n:]
                else:
                    I('%s %s, %s, %s, %s' % (MF, ar(O(dt, qt), 16), ar(VF + 4 * f, 4), vr(P(b, qt, ks), 4), c))
                    for fn in fl:
                        fn(st)

    held = []
    for g in sorted(k for k in sc.fill if k < 16):
        keep = []
        for ent in sc.fill[g]:
            (held if ent[0] in (2, 3, 4) else keep).append((g, ent) if ent[0] in (2, 3, 4) else ent)
        sc.fill[g] = keep
    qk(0, -16, raw=True)

    def maxops(b, qt, dst, first):
        r = S(b, qt)
        ops = []
        if first:
            ops.append('v_max3_f32 v%d, v%d, v%d, v%d' % (dst, r, r + 1, r + 2))
            ops.append('v_max_f32 v%d, v%d, v%d' % (dst, dst, r + 3))
            k = 4
        else:
            k = 0
        while k < 16:
            ops.append('v_max3_f32 v%d, v%d, v%d, v%d' % (dst, dst, r + k, r + k + 1))
            k += 2
        return ops
    extra = {}
    m0 = maxops(0, 0, TMP, True)
    m1 = maxops(0, 1, TMP + 1, True)
    for k in range(8):
        extra.setdefault(4 + k, []).append(lambda s_, t=m0[k]: s_.I(t))
        extra.setdefault(4 + k, []).append(lambda s_, t=m1[k]: s_.I(t))
    st.mark('body0')
    qk(1, 0, raw=True, extra=extra)
    I('s_nop 7')
    I('s_nop 1')
    for a, b_ in zip(maxops(1, 0, TMP, False), maxops(1, 1, TMP + 1, False)):
        I(a)
        I(b_)
    I('v_mov_b32 v%d, v%d' % (TMP + 2, TMP))
    I('v_mov_b32 v%d, v%d' % (TMP + 3, TMP + 1))
    I('s_nop 1')
    I('v_permlane32_swap_b32 v%d, v%d' % (TMP, TMP + 2))
    I('v_permlane32_swap_b32 v%d, v%d' % (TMP + 1, TMP + 3))
    I('s_cmp_eq_u32 s%d, 0' % S_FLAG)
    I('s_cselect_b64 vcc, -1, 0')
    I('v_max_f32 v%d, v%d, v%d' % (TMP, TMP, TMP + 2))
    I('v_max_f32 v%d, v%d, v%d' % (TMP + 1, TMP + 1, TMP + 3))
    I('v_add_f32 v%d, 0x%08x, v%d' % (TMP, f32bits(BIAS), TMP))
    I('v_add_f32 v%d, 0x%08x, v%d' % (TMP + 1, f32bits(BIAS), TMP + 1))
    I('v_cndmask_b32 v%d, v%d, v%d, vcc' % (TMP, MTRUE, TMP))
    I('v_cndmask_b32 v%d, v%d, v%d, vcc' % (TMP + 1, MTRUE + 1, TMP + 1))
    I('v_sub_f32 v%d, 0, v%d' % (TMP + 4, TMP))
    I('v_sub_f32 v%d, 0, v%d' % (TMP + 5, TMP))
    I('v_sub_f32 v%d, 0, v%d' % (TMP + 6, TMP + 1))
    I('v_sub_f32 v%d, 0, v%d' % (TMP + 7, TMP + 1))
    for b in range(2):
        for qt in range(2):
            for k in range(0, 16, 2):
                r = S(b, qt) + k
                I('v_pk_add_f32 %s, %s, %s' % (vr(r, 2), vr(r, 2), vr(TMP + 4 + 2 * qt, 2)))
    for qt in range(2):
        for k in range(0, 16, 2):
            I('v_mov_b64 %s, %s' % (vr(NEGM + 16 * qt + k, 2), vr(TMP + 4 + 2 * qt, 2)))
    held.sort(key=lambda t: (t[0], t[1][0], t[1][1]))
    for g, ent in held:
        ent[2](st)
    I('s_nop 1')
    stamp(st, 3, opts)
    for j in range(32):
        if j > 0:
            st.mark('body%d' % j)
            qk(2 * j + 1, 64 * j)
        pv(2 * j, 64 * j + 16)
        if j < 31:
            qk(2 * j + 2, 64 * j + 32)
        else:
            sc.flush_upto(st, 64 * j + 47)
            I('s_nop 1')
        pv(2 * j + 1, 64 * j + 48)
    st.mark('epi')
    assert not any(sc.fill.values()), sorted(sc.fill)
    stamp(st, 4, opts)
    I('v_mov_b32 v%d, v%d' % (TMP, LSUM))
    I('v_mov_b32 v%d, v%d' % (TMP + 1, LSUM + 1))
    I('v_mov_b32 v%d, 0' % (TMP + 8))
    I('v_mov_b32 v%d, 0' % (TMP + 9))
    I('v_permlane32_swap_b32 v%d, v%d' % (TMP, LSUM))
    I('v_permlane32_swap_b32 v%d, v%d' % (TMP + 1, LSUM + 1))
    I('s_mov_b32 s31, 262144')
    I('v_add_f32 v%d, v%d, v%d' % (TMP, TMP, LSUM))
    I('v_add_f32 v%d, v%d, v%d' % (TMP + 1, TMP + 1, LSUM + 1))
    I('v_rcp_f32 v%d, v%d' % (TMP + 4, TMP))
    I('v_rcp_f32 v%d, v%d' % (TMP + 6, TMP + 1))
    I('v_mul_f32 v%d, 0x43800000, v%d' % (TMP + 2, TMP))
    I('v_mul_f32 v%d, 0x43800000, v%d' % (TMP + 3, TMP + 1))
    I('v_mul_f32 v%d, 0, v%d' % (TMP + 2, TMP + 2))
    I('v_mul_f32 v%d, 0, v%d' % (TMP + 3, TMP + 3))
    I('v_mov_b32 v%d, v%d' % (TMP + 5, TMP + 4))
    I('v_mov_b32 v%d, v%d' % (TMP + 7, TMP + 6))
    k = 0
    for dt in range(4):
        for qt in range(2):
            for t in range(2):
                src = O(dt, qt) + 8 * t
                tb = 128 + 8 * (k % 8)
                ob = 192 + 4 * (k % 8)
                for r in range(8):
                    I('v_accvgpr_read_b32 v%d, a%d' % (tb + r, src + r))
                for r in range(0, 8, 2):
                    I('v_pk_mul_f32 %s, %s, %s' % (vr(tb + r, 2), vr(tb + r, 2), vr(TMP + 4 + 2 * qt, 2)))
                for r in range(0, 8, 2):
                    I('v_cvt_pk_bf16_f32 v%d, v%d, v%d' % (ob + r // 2, tb + r, tb + r + 1))
                f = 2 * dt + t
                if f < 4:
                    I('buffer_store_dwordx4 %s, v%d, s[%d:%d], %s offen offset:%d' % (
                        vr(ob, 4), VOFFO, S_O, S_O + 3, 's31' if qt else '0', f * 1024))
                else:
                    if dt == 2 and qt == 0 and t == 0:
                        I('v_add_u32 v%d, 4096, v%d' % (T2, VOFFO))
                    I('buffer_store_dwordx4 %s, v%d, s[%d:%d], %s offen offset:%d' % (
                        vr(ob, 4), T2, S_O, S_O + 3, 's31' if qt else '0', (f - 4) * 1024))
                for r in range(0, 8, 2):
                    I('v_pk_fma_f32 %s, %s, %s, %s' % (vr(TMP + 2, 2), vr(tb + r, 2), vr(TMP + 8, 2), vr(TMP + 2, 2)))
                k += 1
    I('v_add_f32 v%d, v%d, v%d' % (TMP + 2, TMP + 2, TMP + 3))
    I('s_nop 0')
    I('v_cmp_u_f32 vcc, v%d, v%d' % (TMP + 2, TMP + 2))
    if opts.get('force_fallback'):
        I('s_mov_b64 vcc, -1')
    if opts.get('no_fallback'):
        I('s_mov_b64 vcc, 0')
    I('s_cmp_lg_u32 s%d, 0' % S_FLAG)
    I('s_cbranch_scc1 L_attn_done')
    I('s_cmp_lg_u64 vcc, 0')
    I('s_cselect_b32 s32, 1, 0')
    I('v_mov_b32 v%d, s32' % TMP)
    I('s_lshr_b32 s33, s%d, 10' % S_WB)
    I('v_mov_b32 v%d, s33' % (TMP + 1))
    I('v_add_u32 v%d, 0x20000, v%d' % (TMP + 1, TMP + 1))
    I('ds_write_b32 v%d, v%d' % (TMP + 1, TMP), 'flag')
    I('v_mov_b32 v%d, 0x20000' % (TMP + 1))
    st.drain(vm=False)
    I('s_barrier')
    I('ds_read_b128 %s, v%d' % (vr(TMP + 4, 4), TMP + 1), 'flag')
    st.drain(vm=False)
    I('v_or3_b32 v%d, v%d, v%d, v%d' % (TMP + 4, TMP + 4, TMP + 5, TMP + 6))
    I('v_or_b32 v%d, v%d, v%d' % (TMP + 4, TMP + 4, TMP + 7))
    I('s_nop 0')
    I('v_readfirstlane_b32 s32, v%d' % (TMP + 4))
    I('s_nop 3')
    I('s_cmp_eq_u32 s32, 0')
    I('s_cbranch_scc1 L_attn_done')
    st.mark('fb')
    I('s_mov_b32 s%d, 1' % S_FLAG)
    I('s_mov_b32 s%d, 0' % S_KOFF)
    I('s_mov_b32 s%d, 0' % S_CNT)
    I('v_mov_b32 v%d, 0xff800000' % MTRUE)
    I('v_mov_b32 v%d, 0xff800000' % (MTRUE + 1))
    p.label('L_attn_maxloop')
    st.mark('maxloop')
    I('s_barrier')
    for i in range(4):
        dma_k(0, i, 'fbk')(st)
    st.drain()
    I('s_barrier')
    for kt in range(2):
        for s in range(8):
            kread(0, kt, s)(st)
        st.drain(vm=False)
        for s in range(8):
            for qt in range(2):
                I('%s %s, %s, %s, %s' % (MF, vr(S(kt, qt), 16), ar(KF + 4 * s, 4), vr(Q(qt, s), 4),
                                        vr(S(kt, qt), 16) if s else '0'))
        I('s_nop 7')
        I('s_nop 7')
    for kt in range(2):
        for qt in range(2):
            for t in maxops(kt, qt, MTRUE + qt, False):
                I(t)
    I('s_add_u32 s%d, s%d, 1' % (S_CNT, S_CNT))
    I('s_cmp_lt_u32 s%d, 32' % S_CNT)
    I('s_cbranch_scc1 L_attn_maxloop')
    st.mark('maxloop_end')
    I('v_mov_b32 v%d, v%d' % (TMP + 2, MTRUE))
    I('v_mov_b32 v%d, v%d' % (TMP + 3, MTRUE + 1))
    I('s_nop 1')
    I('v_permlane32_swap_b32 v%d, v%d' % (MTRUE, TMP + 2))
    I('v_permlane32_swap_b32 v%d, v%d' % (MTRUE + 1, TMP + 3))
    I('s_mov_b32 s%d, 0' % S_KOFF)
    I('s_mov_b32 s%d, 0' % S_VOFF)
    I('v_max_f32 v%d, v%d, v%d' % (MTRUE, MTRUE, TMP + 2))
    I('v_max_f32 v%d, v%d, v%d' % (MTRUE + 1, MTRUE + 1, TMP + 3))
    I('s_barrier')
    for t in range(3):
        for i in range(4):
            dma_k(t, i, 'fbk')(st)
    for t in range(2):
        for i in range(4):
            dma_v(t, i)(st)
    st.drain()
    I('s_barrier')
    for s in range(8):
        kread(0, 0, s)(st)
    st.drain()
    I('s_branch L_attn_first')
    st.mark('done')
    p.label('L_attn_done')
    stamps_end(st, opts, 'L_attn_end', S_WB, 5, 6)
    p.label('L_attn_end')
    I('s_endpgm')

    items = p.items
    M = st.marks
    lin = [i for i in items[:M['fb']] if isinstance(i, Inst)]
    errs = check_trace(lin, 'attn main')
    fb = [i for i in items[M['epi']:M['maxloop_end']] if isinstance(i, Inst)] + \
         [i for i in items[M['maxloop']:M['done']] if isinstance(i, Inst)] + \
         [i for i in items[M['first']:M['body2']] if isinstance(i, Inst)]
    errs += check_trace(fb, 'attn fallback')
    assert opts.get('nocheck') or not errs
    def body_text(j):
        a = M['body%d' % j]
        b = M['body%d' % (j + 1)] if j < 31 else M['epi']
        return [x.text if isinstance(x, Inst) else x for x in items[a:b]]
    LO, NB = 1, 28
    for j in range(LO, LO + NB - 4):
        assert body_text(j) == body_text(j + 4), ('body mismatch', j)
    out = Prog()
    out.items = items[:M['body%d' % LO]]
    out.I('s_mov_b32 s%d, 0' % S_CNT)
    if opts.get('align'):
        out.raw('.p2align %d' % opts['align'])
    out.label('L_attn_loop')
    loop = items[M['body%d' % LO]:M['body%d' % (LO + 4)]]
    out.items += loop[:-6]
    out.I('s_add_u32 s%d, s%d, 1' % (S_CNT, S_CNT))
    out.items += loop[-6:]
    out.I('s_cmp_lt_u32 s%d, %d' % (S_CNT, NB // 4))
    out.I('s_cbranch_scc1 L_attn_loop')
    out.items += items[M['body%d' % (LO + NB)]:]
    return out
```

```python
import struct
from asmlib import Prog, Inst, check_trace

WS_MOD = 0
WS_H = 0x10000
WS_O = 0x400000
WS_X1 = 0x1400000
WS_H2 = 0x1800000
WS_HH = 0x2000000
WS_PART = 0x3000000

MF = 'v_mfma_f32_32x32x16_bf16'


def vr(b, n):
    return 'v[%d:%d]' % (b, b + n - 1)


def ar(b, n):
    return 'a[%d:%d]' % (b, b + n - 1)


def sr(b, n):
    return 's[%d:%d]' % (b, b + n - 1)


def f32bits(x):
    return struct.unpack('<I', struct.pack('<f', x))[0]


class Stream:
    def __init__(self):
        self.p = Prog()
        self.lg = []
        self.lg_done = -1
        self.vm = []
        self.vm_done = -1
        self.marks = {}

    def mark(self, name):
        self.marks[name] = len(self.p.items)

    def I(self, text, tag=None):
        self.p.I(text)
        ins = self.p.items[-1]
        if isinstance(ins, Inst):
            if ins.kind in ('dsread', 'dswrite'):
                self.lg.append(tag)
            elif ins.kind in ('vload', 'vstore', 'dma'):
                self.vm.append(tag)

    def _last(self, q, tag):
        for i in range(len(q) - 1, -1, -1):
            if q[i] == tag:
                return i
        raise KeyError(tag)

    def need(self, lg=None, vm=None):
        parts = []
        if vm is not None:
            i = self._last(self.vm, vm)
            if i > self.vm_done:
                n = min(len(self.vm) - 1 - i, 63)
                parts.append('vmcnt(%d)' % n)
                self.vm_done = len(self.vm) - 1 - n
        if lg is not None:
            i = self._last(self.lg, lg)
            if i > self.lg_done:
                n = min(len(self.lg) - 1 - i, 15)
                parts.append('lgkmcnt(%d)' % n)
                self.lg_done = len(self.lg) - 1 - n
        if parts:
            self.p.I('s_waitcnt ' + ' '.join(parts))

    def drain(self, vm=True, lg=True):
        parts = []
        if vm:
            parts.append('vmcnt(0)')
            self.vm_done = len(self.vm) - 1
        if lg:
            parts.append('lgkmcnt(0)')
            self.lg_done = len(self.lg) - 1
        self.p.I('s_waitcnt ' + ' '.join(parts))


class Sched:
    def __init__(self):
        self.fill = {}

    def add(self, g, fn, prio=5):
        self.fill.setdefault(g, []).append((prio, len(self.fill.get(g, [])), fn))

    def pop(self, g):
        l = self.fill.pop(g, [])
        l.sort(key=lambda t: (t[0], t[1]))
        return [t[2] for t in l]

    def flush_upto(self, st, g):
        for k in sorted(k for k in self.fill if k <= g):
            for fn in self.pop(k):
                fn(st)


def srd(I, d, src, size, add=None):
    if add is None:
        if d != src:
            I('s_mov_b32 s%d, s%d' % (d, src))
            I('s_mov_b32 s%d, s%d' % (d + 1, src + 1))
    else:
        I('s_add_u32 s%d, s%d, %s' % (d, src, add))
        I('s_addc_u32 s%d, s%d, 0' % (d + 1, src + 1))
    I('s_mov_b32 s%d, %s' % (d + 2, size))
    I('s_mov_b32 s%d, 0x20000' % (d + 3))


def stamp(st, idx, opts):
    if opts.get('stamps'):
        st.p.I('s_memtime s[%d:%d]' % (40 + 2 * idx, 41 + 2 * idx))
        st.p.I('s_memrealtime s[%d:%d]' % (64 + 2 * idx, 65 + 2 * idx))
        st.p.I('s_waitcnt lgkmcnt(0)')
        st.lg_done = len(st.lg) - 1


def stamps_begin(st, opts):
    if opts.get('stamps'):
        st.I('s_load_dwordx2 s[36:37], s[0:1], 96')
        st.I('s_memtime s[40:41]')
        st.I('s_memrealtime s[64:65]')


def stamps_end(st, opts, endlabel, wave_sgpr, idx_a, idx_b):
    if not opts.get('stamps'):
        return
    I = st.I
    stamp(st, idx_a, opts)
    I('s_waitcnt vmcnt(0)')
    stamp(st, idx_b, opts)
    I('s_cmp_lg_u32 s2, %d' % opts.get('stampwg', 0))
    I('s_cbranch_scc1 %s' % endlabel)
    I('s_cmp_lg_u32 s%d, 0' % wave_sgpr)
    I('s_cbranch_scc1 %s' % endlabel)
    I('s_mov_b64 exec, -1')
    I('v_mov_b32 v1, 0')
    for k in range(1, 10):
        I('s_sub_u32 s32, s%d, s40' % (40 + 2 * k))
        I('v_mov_b32 v2, s32')
        I('global_store_dword v1, v2, s[36:37] offset:%d' % (4 * k))
    for k in range(1, 10):
        I('s_sub_u32 s32, s%d, s64' % (64 + 2 * k))
        I('v_mov_b32 v2, s32')
        I('global_store_dword v1, v2, s[36:37] offset:%d' % (64 + 4 * k))
    I('v_mov_b32 v2, s64')
    I('global_store_dword v1, v2, s[36:37] offset:0')
    I('v_mov_b32 v2, s%d' % (64 + 2 * idx_b))
    I('global_store_dword v1, v2, s[36:37] offset:64')
```

```python
from common import *

LOG2E = 1.4426950408889634
CS = 128 ** -0.5 * LOG2E
DPP = ' row_mask:0xf bank_mask:0xf'


def finish(st, name):
    errs = check_trace(st.p.insts(), name)
    assert not errs
    return st.p


def unpack(I, dst, src, n):
    for k in range(n):
        I('v_lshlrev_b32 v%d, 16, v%d' % (dst + 2 * k, src + k))
        I('v_and_b32 v%d, 0xffff0000, v%d' % (dst + 2 * k + 1, src + k))


def rows_allreduce(I, regs, tmp):
    for sw in ('v_permlane16_swap_b32', 'v_permlane32_swap_b32'):
        for k, r in enumerate(regs):
            I('v_mov_b32 v%d, v%d' % (tmp + k, r))
        I('s_nop 1')
        for k, r in enumerate(regs):
            I('%s v%d, v%d' % (sw, r, tmp + k))
        for k, r in enumerate(regs):
            I('v_add_f32 v%d, v%d, v%d' % (r, r, tmp + k))


def dpp_add(I, regs, ctrl):
    if len(regs) < 3:
        I('s_nop 1')
    for r in regs:
        I('v_add_f32_dpp v%d, v%d, v%d %s%s' % (r, r, r, ctrl, DPP))


def gen_mod(opts):
    st = Stream(); I = st.I; p = st.p
    p.label('mod_kernel')
    I('s_cmp_ge_u32 s2, 192')
    I('s_cbranch_scc1 L_mod_end')
    I('s_load_dwordx4 s[4:7], s[0:1], 72')
    I('s_load_dwordx2 s[16:17], s[0:1], 104')
    stamps_begin(st, opts)
    I('v_lshrrev_b32 v1, 1, v0')
    I('v_and_b32 v2, 1, v0')
    I('v_mul_u32_u24 v3, 6144, v1')
    I('v_lshl_add_u32 v3, v2, 4, v3')
    I('s_lshl_b32 s3, s2, 5')
    I('v_add_u32 v3, s3, v3')
    I('v_lshlrev_b32 v4, 1, v1')
    I('v_lshrrev_b32 v5, 6, v0')
    I('s_mov_b32 s21, 786432')
    I('v_readfirstlane_b32 s20, v5')
    I('s_mov_b32 s22, 1572864')
    I('s_mov_b32 s23, 2359296')
    I('s_waitcnt lgkmcnt(0)')
    srd(I, 8, 4, 1024)
    srd(I, 12, 6, 3145728)
    srd(I, 16, 16, 12288)
    for j in range(4):
        I('buffer_load_ushort v%d, v4, s[8:11], 0 offen offset:%d' % (8 + j, 256 * j), ('c', j))
    for j in range(4):
        I('buffer_load_dwordx4 %s, v3, s[12:15], %s offen' % (vr(12 + 4 * j, 4), ['0', 's21', 's22', 's23'][j]), ('w', j))
    st.need(vm=('c', 3))
    for j in range(4):
        I('v_lshlrev_b32 v%d, 16, v%d' % (8 + j, 8 + j))
    for j in range(4):
        I('v_mul_f32 v%d, 0x%08x, v%d' % (28 + j, f32bits(-LOG2E), 8 + j))
    for j in range(4):
        I('v_exp_f32 v%d, v%d' % (28 + j, 28 + j))
    for j in range(4):
        I('v_add_f32 v%d, 1.0, v%d' % (28 + j, 28 + j))
    for j in range(4):
        I('v_rcp_f32 v%d, v%d' % (28 + j, 28 + j))
    for j in range(4):
        I('v_mul_f32 v%d, v%d, v%d' % (8 + j, 8 + j, 28 + j))
    I('v_cvt_pk_bf16_f32 v28, v8, v9')
    I('v_cvt_pk_bf16_f32 v29, v10, v11')
    unpack(I, 8, 28, 2)
    for j in range(4):
        st.need(vm=('w', j))
        unpack(I, 40, 12 + 4 * j, 4)
        for k in range(8):
            if j == 0:
                I('v_mul_f32 v%d, v8, v%d' % (32 + k, 40 + k))
            else:
                I('v_fmac_f32 v%d, v%d, v%d' % (32 + k, 8 + j, 40 + k))
    acc = list(range(32, 40))
    dpp_add(I, acc, 'quad_perm:[2,3,0,1]')
    dpp_add(I, acc, 'row_ror:4')
    dpp_add(I, acc, 'row_ror:8')
    I('v_lshrrev_b32 v5, 4, v0')
    I('v_lshlrev_b32 v5, 6, v5')
    I('v_lshl_add_u32 v5, v2, 5, v5')
    I('v_and_b32 v6, 15, v0')
    I('v_cmp_gt_u32 vcc, 2, v6')
    I('s_and_saveexec_b64 s[24:25], vcc')
    I('ds_write_b128 v5, v[32:35]')
    I('ds_write_b128 v5, v[36:39] offset:16')
    I('s_mov_b64 exec, s[24:25]')
    st.drain(vm=False)
    I('s_barrier')
    I('s_cmp_lg_u32 s20, 0')
    I('s_cbranch_scc1 L_mod_end')
    I('v_lshlrev_b32 v5, 2, v6')
    for r in range(0, 16, 2):
        I('ds_read2_b32 %s, v5 offset0:%d offset1:%d' % (vr(12 + r, 2), 16 * r, 16 * r + 16))
    st.drain(vm=False)
    for w in (8, 4, 2, 1):
        for k in range(w):
            I('v_add_f32 v%d, v%d, v%d' % (12 + k, 12 + k, 12 + k + w))
    I('v_cvt_pk_bf16_f32 v12, v12, v12')
    I('s_lshl_b32 s3, s2, 6')
    I('v_lshlrev_b32 v12, 16, v12')
    I('v_add_u32 v5, s3, v5')
    I('v_cmp_gt_u32 vcc, 16, v0')
    I('s_and_saveexec_b64 s[24:25], vcc')
    I('buffer_store_dword v12, v5, s[16:19], 0 offen')
    stamps_end(st, opts, 'L_mod_end', 20, 5, 6)
    p.label('L_mod_end')
    I('s_endpgm')
    return finish(st, 'mod')


def wave_allreduce(I, regs, tmp):
    dpp_add(I, regs, 'quad_perm:[1,0,3,2]')
    dpp_add(I, regs, 'quad_perm:[2,3,0,1]')
    dpp_add(I, regs, 'row_ror:4')
    dpp_add(I, regs, 'row_ror:8')
    rows_allreduce(I, regs, tmp)


def gen_h(opts):
    st = Stream(); I = st.I; p = st.p
    p.label('h_kernel')
    I('s_cmp_ge_u32 s2, 256')
    I('s_cbranch_scc1 L_h_end')
    I('s_load_dwordx2 s[4:5], s[0:1], 0')
    I('s_load_dwordx2 s[8:9], s[0:1], 104')
    stamps_begin(st, opts)
    I('v_and_b32 v1, 63, v0')
    I('v_lshrrev_b32 v2, 6, v0')
    I('v_lshrrev_b32 v3, 1, v1')
    I('v_readfirstlane_b32 s20, v2')
    I('v_and_b32 v4, 1, v1')
    I('s_lshl_b32 s3, s2, 3')
    I('v_lshl_add_u32 v5, v2, 1, s3')
    I('v_lshlrev_b32 v6, 5, v3')
    I('v_lshl_add_u32 v6, v4, 3, v6')
    I('v_lshl_add_u32 v7, v5, 10, v6')
    I('v_lshlrev_b32 v8, 1, v6')
    I('v_lshrrev_b32 v9, 5, v5')
    I('v_lshl_add_u32 v9, v9, 5, v3')
    I('v_lshlrev_b32 v9, 10, v9')
    I('v_and_b32 v10, 31, v5')
    I('v_lshl_add_u32 v10, v4, 5, v10')
    I('v_lshl_add_u32 v9, v10, 4, v9')
    I('s_waitcnt lgkmcnt(0)')
    srd(I, 4, 4, 2097152)
    srd(I, 12, 8, 2097152, add=str(WS_H))
    srd(I, 8, 8, 12288)
    for r in range(2):
        I('buffer_load_dwordx2 %s, v7, s[4:7], 0 offen offset:%d' % (vr(12 + 4 * r, 2), 1024 * r), ('x', r))
        I('buffer_load_dwordx2 %s, v7, s[4:7], 0 offen offset:%d' % (vr(14 + 4 * r, 2), 1024 * r + 16), ('x', r))
    for m in range(2):
        I('buffer_load_dwordx4 %s, v8, s[8:11], 0 offen offset:%d' % (vr(20 + 8 * m, 4), 2048 * m), 'm')
        I('buffer_load_dwordx4 %s, v8, s[8:11], 0 offen offset:%d' % (vr(24 + 8 * m, 4), 2048 * m + 32), 'm')
    st.need(vm=('x', 1))
    unpack(I, 40, 12, 4)
    unpack(I, 48, 16, 4)
    for r in range(2):
        b = 40 + 8 * r
        I('v_add_f32 v%d, v%d, v%d' % (56 + r, b, b + 1))
        for k in range(2, 8):
            I('v_add_f32 v%d, v%d, v%d' % (56 + r, 56 + r, b + k))
    wave_allreduce(I, [56, 57], 60)
    for r in range(2):
        I('v_mul_f32 v%d, 0x%08x, v%d' % (56 + r, f32bits(1.0 / 512), 56 + r))
    for r in range(2):
        for k in range(8):
            I('v_sub_f32 v%d, v%d, v%d' % (40 + 8 * r + k, 40 + 8 * r + k, 56 + r))
    for r in range(2):
        b = 40 + 8 * r
        I('v_mul_f32 v%d, v%d, v%d' % (58 + r, b, b))
        for k in range(1, 8):
            I('v_fmac_f32 v%d, v%d, v%d' % (58 + r, b + k, b + k))
    wave_allreduce(I, [58, 59], 60)
    I('v_mov_b32 v60, 0x%08x' % f32bits(1e-5))
    for r in range(2):
        I('v_mul_f32 v%d, 0x%08x, v%d' % (58 + r, f32bits(1.0 / 512), 58 + r))
    for r in range(2):
        I('v_add_f32 v%d, v60, v%d' % (58 + r, 58 + r))
    for r in range(2):
        I('v_rsq_f32 v%d, v%d' % (58 + r, 58 + r))
    st.need(vm='m')
    for k in range(8):
        I('v_add_f32 v%d, 1.0, v%d' % (28 + k, 28 + k))
    for k in range(4):
        I('v_cvt_pk_bf16_f32 v%d, v%d, v%d' % (12 + k, 28 + 2 * k, 29 + 2 * k))
    unpack(I, 28, 12, 4)
    for k in range(16):
        I('v_mul_f32 v%d, 0x%08x, v%d' % (20 + k, f32bits(CS), 20 + k))
    for r in range(2):
        b = 40 + 8 * r
        for k in range(8):
            I('v_mul_f32 v%d, v%d, v%d' % (b + k, b + k, 58 + r))
        for k in range(8):
            I('v_fma_f32 v%d, v%d, v%d, v%d' % (b + k, b + k, 28 + k, 20 + k))
        for k in range(4):
            I('v_cvt_pk_bf16_f32 v%d, v%d, v%d' % (12 + 4 * r + k, b + 2 * k, b + 2 * k + 1))
        I('buffer_store_dwordx4 %s, v9, s[12:15], 0 offen offset:%d' % (vr(12 + 4 * r, 4), 16 * r))
    stamps_end(st, opts, 'L_h_end', 20, 5, 6)
    p.label('L_h_end')
    I('s_endpgm')
    return finish(st, 'h')


def tr_lane_terms(I, lane, hf, rr, low):
    I('v_lshrrev_b32 v%d, 5, v%d' % (hf, lane))
    I('v_bfe_u32 v%d, v%d, 2, 2' % (rr, lane))
    I('v_and_b32 v%d, 1, v%d' % (low, lane))
    I('v_lshlrev_b32 v%d, 4, v%d' % (low, low))
    I('v_bfe_u32 v%d, v%d, 1, 1' % (low + 1, lane))
    I('v_lshl_add_u32 v%d, v%d, 3, v%d' % (low, low + 1, low))
    I('v_bfe_u32 v%d, v%d, 4, 1' % (low + 1, lane))


def gen_wo(opts):
    st = Stream(); I = st.I; p = st.p
    LEAD = opts.get('wo_lead', 2)
    p.label('wo_kernel')
    I('s_cmp_ge_u32 s2, 256')
    I('s_cbranch_scc1 L_wo_end')
    I('s_load_dwordx2 s[4:5], s[0:1], 32')
    I('s_load_dwordx2 s[8:9], s[0:1], 104')
    stamps_begin(st, opts)
    I('s_bfe_u32 s24, s2, 0x20001')
    I('s_and_b32 s25, s2, 1')
    I('s_lshl_b32 s25, s25, 3')
    I('s_bfe_u32 s26, s2, 0x30003')
    I('s_add_u32 s25, s25, s26')
    I('s_lshr_b32 s26, s2, 6')
    I('v_and_b32 v1, 63, v0')
    I('v_lshrrev_b32 v2, 6, v0')
    tr_lane_terms(I, 1, 3, 4, 5)
    I('v_readfirstlane_b32 s20, v2')
    I('v_lshl_add_u32 v7, v3, 3, v4')
    I('v_lshlrev_b32 v7, 8, v7')
    I('v_and_b32 v8, 1, v2')
    I('v_lshlrev_b32 v8, 1, v8')
    I('v_xor_b32 v8, v8, v4')
    I('v_lshl_add_u32 v7, v8, 6, v7')
    I('v_lshl_add_u32 v7, v6, 5, v7')
    I('v_add_u32 v10, v7, v5')
    I('v_xor_b32 v11, 64, v10')
    I('v_lshrrev_b32 v7, 1, v2')
    I('v_lshlrev_b32 v7, 13, v7')
    I('v_lshl_add_u32 v7, v1, 4, v7')
    I('v_add_u32 v12, 0x10000, v7')
    I('v_lshrrev_b32 v7, 4, v1')
    I('v_and_b32 v8, 15, v1')
    I('v_lshlrev_b32 v9, 2, v7')
    I('v_xor_b32 v8, v8, v9')
    I('v_lshl_add_u32 v7, v2, 4, v7')
    I('v_lshlrev_b32 v7, 10, v7')
    I('v_lshl_add_u32 v13, v8, 4, v7')
    for i in range(1, 4):
        I('v_add_u32 v%d, %d, v13' % (13 + i, i * 3072))
    I('v_lshlrev_b32 v7, 18, v2')
    I('v_lshl_add_u32 v17, v1, 4, v7')
    I('v_lshrrev_b32 v7, 1, v2')
    I('v_lshlrev_b32 v7, 17, v7')
    I('v_and_b32 v8, 1, v2')
    I('v_lshl_add_u32 v7, v8, 13, v7')
    I('v_lshl_add_u32 v18, v1, 4, v7')
    I('s_lshl_b32 s21, s20, 12')
    I('s_waitcnt lgkmcnt(0)')
    I('s_lshl_b32 s27, s24, 20')
    I('s_lshl_b32 s28, s26, 8')
    I('s_add_u32 s27, s27, s28')
    I('s_sub_u32 s28, 4194304, s27')
    srd(I, 4, 4, 's28', add='s27')
    I('s_lshl_b32 s27, s25, 20')
    I('s_lshl_b32 s28, s24, 16')
    I('s_add_u32 s27, s27, s28')
    I('s_add_u32 s27, s27, %d' % WS_O)
    srd(I, 12, 8, 4 * 262144, add='s27')
    I('s_lshl_b32 s27, s24, 22')
    I('s_lshl_b32 s28, s25, 18')
    I('s_add_u32 s27, s27, s28')
    I('s_lshl_b32 s28, s26, 14')
    I('s_add_u32 s27, s27, s28')
    I('s_add_u32 s27, s27, %d' % WS_PART)
    srd(I, 16, 8, 4 * 65536, add='s27')
    I('s_mov_b32 s22, 0')
    I('s_mov_b32 s23, 0')
    NC = 16

    def dma(c):
        l = []
        for i in range(4):
            def fa(st, i=i):
                if i == 0:
                    st.I('s_add_u32 m0, s21, %d' % ((c % 4) * 16384))
                    st.I('s_nop 0')
                st.I('buffer_load_dwordx4 v%d, s[4:7], s22 offen offset:%d lds' % (13 + i, i * 1024), ('C', c))
                if i == 3:
                    st.I('s_add_u32 s22, s22, 65536')
            l.append(fa)
        for i in range(4):
            def fb(st, i=i):
                if i == 0:
                    st.I('s_add_u32 m0, s21, %d' % (65536 + (c % 4) * 16384))
                    st.I('s_nop 0')
                st.I('buffer_load_dwordx4 v17, s[12:15], s23 offen offset:%d lds' % (i * 1024), ('C', c))
                if i == 3:
                    st.I('s_add_u32 s23, s23, 4096')
            l.append(fb)
        return l
    stamp(st, 7, opts)
    for c in range(3):
        for f in dma(c):
            f(st)
    stamp(st, 8, opts)
    ACC = 64
    NS = 4
    FR = 128
    sc = Sched()
    for K in range(NC * 4):
        c, ks = K // 4, K % 4
        b = FR + 16 * (K % NS)
        g0 = 4 * (K - LEAD)
        rd = []
        for ni in range(2):
            for n in range(2):
                rd.append('ds_read_b64_tr_b16 %s, v%d offset:%d' % (vr(b + 4 * ni + 2 * n, 2), 10 + ni,
                                                                   (c % 4) * 16384 + ks * 4096 + n * 1024))
        for mi in range(2):
            rd.append('ds_read_b128 %s, v12 offset:%d' % (vr(b + 8 + 4 * mi, 4), (c % 4) * 16384 + mi * 4096 + ks * 1024))
        order = [rd[0], rd[1], rd[4], rd[5], rd[2], rd[3]]
        for k, t in enumerate(order):
            sc.add(g0 + [0, 0, 1, 2, 3, 3][k], (lambda s_, t=t, K=K: s_.I(t, ('F', K))), prio=6)
        if ks == 0:
            def bar(st, c=c):
                if c > 0:
                    st.need(lg=('F', 4 * c - 1))
                st.need(vm=('C', c))
                st.I('s_barrier')
            sc.add(g0, bar, prio=0)
            if c + 3 < NC:
                for k, f in enumerate(dma(c + 3)):
                    sc.add(g0 + 2 * k + 1, f, prio=7)
    sc.flush_upto(st, -1)
    stamp(st, 1, opts)
    for K in range(NC * 4):
        b = FR + 16 * (K % NS)
        st.need(lg=('F', K))
        for k, (mi, ni) in enumerate(((0, 0), (1, 0), (1, 1), (0, 1))):
            acc = ACC + 32 * mi + 16 * ni
            I('%s %s, %s, %s, %s' % (MF, vr(acc, 16), vr(b + 4 * ni, 4), vr(b + 8 + 4 * mi, 4), '0' if K == 0 else vr(acc, 16)))
            for fn in sc.pop(4 * K + k):
                fn(st)
    assert not sc.fill
    stamp(st, 2, opts)
    I('s_mov_b32 s22, 65536')
    I('v_add_u32 v19, 4096, v18')
    I('s_nop 7')
    I('s_nop 1')
    for (mi, ni) in ((0, 0), (1, 0), (1, 1), (0, 1)):
        for t in range(2):
            for q4 in range(2):
                off = ((2 * ni + t) * 2 + q4) * 1024
                I('buffer_store_dwordx4 %s, v%d, s[16:19], %s offen offset:%d' % (
                    vr(ACC + 32 * mi + 16 * ni + 8 * t + 4 * q4, 4), 18 if off < 4096 else 19, 's22' if mi else '0', off % 4096))
    stamps_end(st, opts, 'L_wo_end', 20, 5, 6)
    p.label('L_wo_end')
    I('s_endpgm')
    return finish(st, 'wo')


def gen_ln2(opts):
    st = Stream(); I = st.I; p = st.p
    p.label('ln2_kernel')
    I('s_cmp_ge_u32 s2, 256')
    I('s_cbranch_scc1 L_ln2_end')
    I('s_load_dwordx2 s[4:5], s[0:1], 0')
    I('s_load_dwordx2 s[8:9], s[0:1], 104')
    stamps_begin(st, opts)
    I('v_and_b32 v1, 63, v0')
    I('v_lshrrev_b32 v2, 6, v0')
    I('v_and_b32 v3, 7, v1')
    I('v_readfirstlane_b32 s20, v2')
    I('v_bfe_u32 v4, v1, 3, 1')
    I('v_lshrrev_b32 v5, 4, v1')
    I('v_lshl_add_u32 v5, v2, 3, v5')
    I('s_and_b32 s3, s2, 3')
    I('s_lshl_b32 s3, s3, 3')
    I('v_add_u32 v6, s3, v3')
    I('v_lshl_add_u32 v6, v4, 5, v6')
    I('v_lshlrev_b32 v6, 4, v6')
    I('v_lshl_add_u32 v7, v5, 11, v6')
    I('v_lshl_add_u32 v8, v5, 10, v6')
    I('v_lshlrev_b32 v9, 5, v5')
    I('v_lshl_add_u32 v9, v4, 4, v9')
    I('v_lshlrev_b32 v10, 1, v9')
    I('s_lshl_b32 s3, s2, 3')
    I('v_add_u32 v11, s3, v3')
    I('v_lshl_add_u32 v9, v11, 10, v9')
    I('s_lshr_b32 s21, s2, 2')
    I('s_waitcnt lgkmcnt(0)')
    srd(I, 4, 4, 2097152)
    I('s_lshl_b32 s22, s21, 16')
    I('s_add_u32 s22, s22, %d' % WS_PART)
    srd(I, 12, 8, 3 * 4194304 + 65536, add='s22')
    I('s_lshl_b32 s22, s21, 15')
    I('s_add_u32 s23, s22, %d' % WS_X1)
    srd(I, 16, 8, 32768, add='s23')
    I('s_add_u32 s23, s22, %d' % WS_H2)
    srd(I, 24, 8, 32768, add='s23')
    srd(I, 8, 8, 12288)
    I('s_mov_b32 s28, 4194304')
    I('s_mov_b32 s29, 8388608')
    I('s_mov_b32 s30, 12582912')
    I('v_add_u32 v12, 8192, v7')
    I('s_mov_b32 s31, 8192')
    PB = 64
    for i in range(2):
        for ks in range(4):
            for q4 in range(2):
                I('buffer_load_dwordx4 %s, v%d, s[12:15], %s offen offset:%d' % (
                    vr(PB + 32 * i + 8 * ks + 4 * q4, 4), 12 if i else 7, ['0', 's28', 's29', 's30'][ks], q4 * 1024), ('p', i))
    for i in range(2):
        I('buffer_load_dwordx4 %s, v9, s[4:7], 0 offen offset:%d' % (vr(16 + 4 * i, 4), 128 * i), 'x')
    I('v_add_u32 v13, 4096, v10')
    for i in range(2):
        for q in range(2):
            I('buffer_load_dwordx4 %s, v13, s[8:11], 0 offen offset:%d' % (vr(128 + 8 * i + 4 * q, 4), 256 * i + 16 * q), 'ga')
    for i in range(2):
        for q in range(2):
            I('buffer_load_dwordx4 %s, v13, s[8:11], 0 offen offset:%d' % (vr(144 + 8 * i + 4 * q, 4), 2048 + 256 * i + 16 * q), 'sb')
    for i in range(2):
        for q in range(2):
            I('buffer_load_dwordx4 %s, v10, s[8:11], s31 offen offset:%d' % (vr(160 + 8 * i + 4 * q, 4), 256 * i + 16 * q), 'cb')
    for i in range(2):
        st.need(vm=('p', i))
        b = PB + 32 * i
        for k in range(0, 8, 2):
            I('v_pk_add_f32 %s, %s, %s' % (vr(b + k, 2), vr(b + k, 2), vr(b + 8 + k, 2)))
            I('v_pk_add_f32 %s, %s, %s' % (vr(b + 16 + k, 2), vr(b + 16 + k, 2), vr(b + 24 + k, 2)))
        for k in range(0, 8, 2):
            I('v_pk_add_f32 %s, %s, %s' % (vr(b + k, 2), vr(b + k, 2), vr(b + 16 + k, 2)))
    st.need(vm='ga')
    unpack(I, 24, 16, 8)
    for i in range(2):
        for k in range(8):
            I('v_fmac_f32 v%d, v%d, v%d' % (24 + 8 * i + k, 128 + 8 * i + k, PB + 32 * i + k))
    for k in range(8):
        I('v_cvt_pk_bf16_f32 v%d, v%d, v%d' % (16 + k, 24 + 2 * k, 25 + 2 * k))
    I('v_add_u32 v14, 4096, v8')
    I('buffer_store_dwordx4 v[16:19], v8, s[16:19], 0 offen')
    I('buffer_store_dwordx4 v[20:23], v14, s[16:19], 0 offen')
    unpack(I, 24, 16, 8)
    I('v_add_f32 v40, v24, v25')
    I('v_mul_f32 v41, v24, v24')
    I('v_fmac_f32 v41, v25, v25')
    for k in range(2, 16):
        I('v_add_f32 v40, v40, v%d' % (24 + k))
        I('v_fmac_f32 v41, v%d, v%d' % (24 + k, 24 + k))
    dpp_add(I, [40, 41], 'row_ror:8')
    rows_allreduce(I, [40, 41], 42)
    I('v_lshlrev_b32 v44, 3, v3')
    I('v_lshl_add_u32 v45, v2, 6, v44')
    I('ds_write_b64 v45, v[40:41]')
    st.drain(vm=False)
    I('s_barrier')
    for w in range(4):
        I('ds_read_b64 %s, v44 offset:%d' % (vr(46 + 2 * w, 2), 64 * w))
    st.need(vm='cb')
    for k in range(16):
        I('v_add_f32 v%d, 1.0, v%d' % (160 + k, 160 + k))
    for k in range(8):
        I('v_cvt_pk_bf16_f32 v%d, v%d, v%d' % (56 + k, 160 + 2 * k, 161 + 2 * k))
    unpack(I, 160, 56, 8)
    st.drain(vm=False)
    I('v_pk_add_f32 v[46:47], v[46:47], v[48:49]')
    I('v_pk_add_f32 v[50:51], v[50:51], v[52:53]')
    I('v_pk_add_f32 v[46:47], v[46:47], v[50:51]')
    I('v_mul_f32 v46, 0x%08x, v46' % f32bits(1.0 / 512))
    I('v_mul_f32 v47, 0x%08x, v47' % f32bits(1.0 / 512))
    I('v_fma_f32 v47, -v46, v46, v47')
    I('v_max_f32 v47, 0, v47')
    I('v_add_f32 v47, 0x%08x, v47' % f32bits(1e-5))
    I('v_rsq_f32 v47, v47')
    for k in range(16):
        I('v_sub_f32 v%d, v%d, v46' % (24 + k, 24 + k))
    for k in range(16):
        I('v_mul_f32 v%d, v%d, v47' % (24 + k, 24 + k))
    for k in range(16):
        I('v_fma_f32 v%d, v%d, v%d, v%d' % (24 + k, 24 + k, 160 + k, 144 + k))
    for k in range(8):
        I('v_cvt_pk_bf16_f32 v%d, v%d, v%d' % (56 + k, 24 + 2 * k, 25 + 2 * k))
    I('buffer_store_dwordx4 v[56:59], v8, s[24:27], 0 offen')
    I('buffer_store_dwordx4 v[60:63], v14, s[24:27], 0 offen')
    stamps_end(st, opts, 'L_ln2_end', 20, 5, 6)
    p.label('L_ln2_end')
    I('s_endpgm')
    return finish(st, 'ln2')


GLU_SLOT = 28928
GLU_U = 14464


def gen_glu(opts):
    st = Stream(); I = st.I; p = st.p
    LEAD = opts.get('glu_lead', 6)
    p.label('glu_kernel')
    I('s_cmp_ge_u32 s2, 256')
    I('s_cbranch_scc1 L_glu_end')
    I('s_load_dwordx4 s[4:7], s[0:1], 48')
    I('s_load_dwordx2 s[8:9], s[0:1], 104')
    stamps_begin(st, opts)
    I('s_and_b32 s25, s2, 1')
    I('s_lshl_b32 s25, s25, 3')
    I('s_bfe_u32 s26, s2, 0x30003')
    I('s_add_u32 s25, s25, s26')
    I('s_and_b32 s26, s2, 6')
    I('s_lshl_b32 s26, s26, 1')
    I('s_lshr_b32 s27, s2, 6')
    I('s_add_u32 s26, s26, s27')
    I('v_and_b32 v1, 63, v0')
    I('v_lshrrev_b32 v2, 6, v0')
    tr_lane_terms(I, 1, 3, 4, 5)
    I('v_readfirstlane_b32 s20, v2')
    I('v_lshl_add_u32 v7, v3, 3, v4')
    I('v_mul_u32_u24 v7, 224, v7')
    I('v_mul_u32_u24 v8, %d, v6' % GLU_U)
    I('v_add3_u32 v10, v7, v8, v5')
    I('v_add_u32 v11, %d, v10' % (2 * GLU_SLOT))
    I('v_and_b32 v8, 1, v2')
    I('v_lshlrev_b32 v8, 5, v8')
    for i in range(7):
        I('v_add_u32 v7, %d, v1' % (64 * i))
        I('v_mul_u32_u24 v9, 4682, v7')
        I('v_lshrrev_b32 v9, 16, v9')
        I('v_mul_u32_u24 v20, 14, v9')
        I('v_sub_u32 v7, v7, v20')
        I('v_add_u32 v9, v9, v8')
        I('v_mul_u32_u24 v9, 3584, v9')
        I('v_lshl_add_u32 v9, v7, 4, v9')
        I('v_subrev_u32 v%d, %d, v9' % (12 + i, (i % 4) * 1024))
    I('v_lshlrev_b32 v7, 15, v2')
    I('v_lshl_add_u32 v19, v1, 4, v7')
    I('v_mul_u32_u24 v7, %d, v2' % (112))
    I('v_lshlrev_b32 v7, 10, v7')
    I('v_lshl_add_u32 v20, v1, 4, v7')
    I('s_lshr_b32 s21, s20, 1')
    I('s_mul_i32 s21, s21, %d' % GLU_U)
    I('s_and_b32 s22, s20, 1')
    I('s_mul_i32 s22, s22, 7168')
    I('s_add_u32 s21, s21, s22')
    I('s_waitcnt lgkmcnt(0)')
    I('s_cmp_lt_u32 s20, 2')
    I('s_cselect_b32 s4, s4, s6')
    I('s_cselect_b32 s5, s5, s7')
    I('s_mul_i32 s27, s26, 224')
    I('s_sub_u32 s28, 1835008, s27')
    srd(I, 4, 4, 's28', add='s27')
    I('s_lshl_b32 s27, s25, 17')
    I('s_add_u32 s27, s27, %d' % WS_H2)
    srd(I, 12, 8, 131072, add='s27')
    I('s_mul_i32 s27, s25, %d' % (4 * 112 * 1024))
    I('s_mul_i32 s28, s26, 7168')
    I('s_add_u32 s27, s27, s28')
    I('s_add_u32 s27, s27, %d' % WS_HH)
    srd(I, 16, 8, 4 * 112 * 1024, add='s27')
    I('s_mov_b32 s22, 0')
    I('s_mov_b32 s23, 0')

    def dma(c):
        l = []
        for i in range(7):
            def fa(st, i=i):
                if i in (0, 4):
                    st.I('s_add_u32 m0, s21, %d' % ((c % 4) * GLU_SLOT + (4096 if i else 0)))
                    st.I('s_nop 0')
                st.I('buffer_load_dwordx4 v%d, s[4:7], s22 offen offset:%d lds' % (12 + i, (i % 4) * 1024), ('C', c))
                if i == 6:
                    st.I('s_add_u32 s22, s22, %d' % (64 * 3584))
            l.append(fa)
        for ks in range(4):
            def fb(st, ks=ks):
                st.I('buffer_load_dwordx4 %s, v19, s[12:15], s23 offen offset:%d' % (ar(16 * c + 4 * ks, 4), ks * 1024),
                     ('B', 4 * c + ks))
                if ks == 3:
                    st.I('s_add_u32 s23, s23, 4096')
            l.append(fb)
        return l
    stamp(st, 7, opts)
    for c in range(3):
        for f in dma(c):
            f(st)
    stamp(st, 8, opts)
    ACC = 32
    FR = 144
    NR = 14
    sc = Sched()
    NF = 8 * 28
    for F in range(NF):
        c, ks, t = F // 28, (F % 28) // 7, F % 7
        b = FR + 4 * (F % NR)
        for n in range(2):
            off = (c % 2) * GLU_SLOT + ks * 16 * 224 + n * 4 * 224 + t * 32
            sc.add(F - LEAD, (lambda s_, b=b, n=n, off=off, c=c, F=F: s_.I(
                'ds_read_b64_tr_b16 %s, v%d offset:%d' % (vr(b + 2 * n, 2), 10 + (c % 4) // 2, off), ('F', F))), prio=6)
        if F % 28 == 0:
            def bar(st, c=c, F=F):
                if c > 0:
                    st.need(lg=('F', F - 1))
                st.need(vm=('C', c))
                st.I('s_barrier')
            sc.add(F - LEAD, bar, prio=0)
            if c + 3 < 8:
                for k, f in enumerate(dma(c + 3)):
                    sc.add(F - LEAD + 2 * k + 1, f, prio=7)
    sc.flush_upto(st, -1)
    stamp(st, 1, opts)
    for F in range(NF):
        c, ks, t = F // 28, (F % 28) // 7, F % 7
        if F % 2 == 0:
            st.need(lg=('F', min(F + 1, NF - 1)))
        st.need(lg=('F', F), vm=('B', 4 * c + ks))
        acc = ACC + 16 * t
        I('%s %s, %s, %s, %s' % (MF, vr(acc, 16), vr(FR + 4 * (F % NR), 4), ar(16 * c + 4 * ks, 4),
                                '0' if F < 7 else vr(acc, 16)))
        for fn in sc.pop(F):
            fn(st)
    assert not sc.fill
    stamp(st, 2, opts)
    I('v_add_u32 v21, 4096, v20')
    I('s_nop 4')
    for t in range(7):
        acc = ACC + 16 * t
        if t == 6:
            I('s_nop 1')
        for k in range(0, 8, 2):
            I('v_pk_mul_f32 %s, %s, %s' % (vr(acc + k, 2), vr(acc + k, 2), vr(acc + 8 + k, 2)))
        for k in range(4):
            I('v_cvt_pk_bf16_f32 v%d, v%d, v%d' % (acc + 8 + k, acc + 2 * k, acc + 2 * k + 1))
        I('buffer_store_dwordx4 %s, v%d, s[16:19], 0 offen offset:%d' % (vr(acc + 8, 4), 20 if t < 4 else 21, (t % 4) * 1024))
    stamps_end(st, opts, 'L_glu_end', 20, 5, 6)
    p.label('L_glu_end')
    I('s_endpgm')
    return finish(st, 'glu')


def gen_down(opts):
    st = Stream(); I = st.I; p = st.p
    LEAD = opts.get('down_lead', 2)
    p.label('down_kernel')
    I('s_cmp_ge_u32 s2, 256')
    I('s_cbranch_scc1 L_down_end')
    I('s_load_dwordx2 s[4:5], s[0:1], 64')
    I('s_load_dwordx2 s[8:9], s[0:1], 104')
    I('s_load_dwordx2 s[24:25], s[0:1], 88')
    stamps_begin(st, opts)
    I('s_and_b32 s28, s2, 6')
    I('s_lshl_b32 s28, s28, 2')
    I('s_bfe_u32 s29, s2, 0x30003')
    I('s_add_u32 s28, s28, s29')
    I('s_and_b32 s29, s2, 1')
    I('s_lshl_b32 s29, s29, 2')
    I('s_lshr_b32 s30, s2, 6')
    I('s_add_u32 s29, s29, s30')
    I('v_and_b32 v1, 63, v0')
    I('v_lshrrev_b32 v2, 6, v0')
    tr_lane_terms(I, 1, 3, 4, 5)
    I('v_readfirstlane_b32 s20, v2')
    I('v_lshl_add_u32 v7, v3, 3, v4')
    I('v_lshlrev_b32 v7, 7, v7')
    I('v_lshrrev_b32 v8, 1, v4')
    I('v_lshl_add_u32 v7, v8, 6, v7')
    I('v_lshl_add_u32 v7, v6, 5, v7')
    I('v_lshl_add_u32 v7, v2, 15, v7')
    I('v_add_u32 v10, v7, v5')
    I('v_xor_b32 v11, 64, v10')
    I('v_lshrrev_b32 v7, 3, v1')
    I('v_and_b32 v8, 7, v1')
    I('v_bfe_u32 v9, v1, 4, 1')
    I('v_lshlrev_b32 v9, 2, v9')
    I('v_xor_b32 v8, v8, v9')
    I('v_mul_u32_u24 v9, 448, v2')
    I('v_add_u32 v7, v7, v9')
    I('v_lshlrev_b32 v7, 10, v7')
    I('v_lshl_add_u32 v12, v8, 4, v7')
    for i in range(1, 4):
        I('v_add_u32 v%d, %d, v12' % (12 + i, i * 7168))
    I('v_mul_u32_u24 v7, 28672, v2')
    I('v_lshl_add_u32 v16, v1, 4, v7')
    I('v_lshrrev_b32 v7, 1, v2')
    I('v_and_b32 v8, 1, v2')
    I('v_lshlrev_b32 v9, 15, v7')
    I('v_lshl_add_u32 v9, v8, 11, v9')
    I('v_lshl_add_u32 v17, v1, 4, v9')
    I('v_lshlrev_b32 v9, 7, v8')
    I('v_lshl_add_u32 v18, v3, 5, v9')
    I('v_and_b32 v9, 31, v1')
    I('v_lshl_add_u32 v9, v7, 5, v9')
    I('v_lshlrev_b32 v9, 10, v9')
    I('v_lshrrev_b32 v19, 1, v18')
    I('v_add_u32 v19, v19, v9')
    I('s_lshl_b32 s21, s20, 15')
    I('s_waitcnt lgkmcnt(0)')
    I('s_lshl_b32 s30, s29, 7')
    I('s_sub_u32 s31, 1835008, s30')
    srd(I, 4, 4, 's31', add='s30')
    I('s_mul_i32 s30, s28, %d' % (2 * 112 * 1024))
    I('s_add_u32 s30, s30, %d' % WS_HH)
    srd(I, 12, 8, 2 * 112 * 1024, add='s30')
    I('s_lshl_b32 s30, s28, 16')
    I('s_lshl_b32 s31, s29, 12')
    I('s_add_u32 s30, s30, s31')
    I('s_add_u32 s30, s30, %d' % WS_X1)
    srd(I, 16, 8, 65536, add='s30')
    I('s_lshl_b32 s30, s28, 16')
    I('s_lshl_b32 s31, s29, 7')
    I('s_add_u32 s30, s30, s31')
    I('s_sub_u32 s31, 2097152, s30')
    srd(I, 24, 24, 's31', add='s30')
    I('s_lshl_b32 s30, s29, 8')
    I('s_add_u32 s30, s30, %d' % (5 * 2048))
    srd(I, 8, 8, 256, add='s30')
    I('s_mov_b32 s22, 0')
    I('s_mov_b32 s23, 32768')
    I('s_mov_b32 s28, 0')
    I('s_mov_b32 s29, %d' % (112 * 1024))
    NC = 7
    BR = 0

    def dma(c):
        l = []
        for i in range(8):
            def fa(st, i=i):
                if i in (0, 4):
                    st.I('s_add_u32 m0, s21, %d' % ((c % 4) * 8192 + (4096 if i else 0)))
                    st.I('s_nop 0')
                st.I('buffer_load_dwordx4 v%d, s[4:7], s%d offen offset:%d lds' % (12 + i % 4, 22 if i < 4 else 23, (i % 4) * 1024),
                     ('C', c))
                if i == 7:
                    st.I('s_add_u32 s22, s22, 65536')
                    st.I('s_add_u32 s23, s23, 65536')
            l.append(fa)
        lb = []
        for ks in range(4):
            for mi in range(2):
                def fb(st, ks=ks, mi=mi):
                    st.I('buffer_load_dwordx4 %s, v16, s[12:15], s%d offen offset:%d' % (
                        ar(BR + 32 * (c % 4) + 8 * ks + 4 * mi, 4), 29 if mi else 28, ks * 1024), ('B', 4 * c + ks))
                    if ks == 3 and mi == 1:
                        st.I('s_add_u32 s28, s28, 4096')
                        st.I('s_add_u32 s29, s29, 4096')
                lb.append(fb)
        return l + lb
    stamp(st, 7, opts)
    for c in range(3):
        for f in dma(c):
            f(st)
    stamp(st, 8, opts)
    ACC = 64
    FR = 128
    NS = 4
    sc = Sched()
    for K in range(NC * 4):
        c, ks = K // 4, K % 4
        b = FR + 8 * (K % NS)
        g0 = 4 * (K - LEAD)
        if ks == 0:
            sc.add(g0, (lambda s_, c=c: s_.need(vm=('C', c))), prio=0)
        for ni in range(2):
            for n in range(2):
                t = 'ds_read_b64_tr_b16 %s, v%d offset:%d' % (vr(b + 4 * ni + 2 * n, 2), 10 + ni,
                                                              (c % 4) * 8192 + ks * 2048 + n * 512)
                sc.add(g0 + 2 * ni + n, (lambda s_, t=t, K=K: s_.I(t, ('F', K))), prio=6)
        if ks == 0 and c + 3 < NC:
            for k, f in enumerate(dma(c + 3)):
                sc.add(4 * K + k, f, prio=7)
    sc.add(4 * 24, lambda s_: [s_.I('buffer_load_dwordx4 %s, v17, s[16:19], 0 offen offset:%d' % (vr(20 + 4 * t, 4), 1024 * t), 'x1')
                              for t in range(2)], prio=8)
    sc.add(4 * 24 + 1, lambda s_: [s_.I('buffer_load_dwordx4 %s, v18, s[8:11], 0 offen offset:%d' % (vr(28 + 4 * q, 4), 64 * (q // 2) + 16 * (q % 2)), 'gb')
                                  for q in range(4)], prio=8)
    sc.flush_upto(st, -1)
    stamp(st, 1, opts)
    for K in range(NC * 4):
        c, ks = K // 4, K % 4
        b = FR + 8 * (K % NS)
        st.need(lg=('F', K), vm=('B', K))
        for k, (mi, ni) in enumerate(((0, 0), (1, 0), (1, 1), (0, 1))):
            acc = ACC + 32 * mi + 16 * ni
            I('%s %s, %s, %s, %s' % (MF, vr(acc, 16), vr(b + 4 * ni, 4), ar(BR + 32 * (c % 4) + 8 * ks + 4 * mi, 4),
                                    '0' if K == 0 else vr(acc, 16)))
            for fn in sc.pop(4 * K + k):
                fn(st)
    assert not sc.fill
    stamp(st, 2, opts)
    I('v_lshlrev_b32 v7, 4, v1')
    I('v_lshl_add_u32 v8, v2, 15, v7')
    I('v_lshl_add_u32 v9, v2, 12, v7')
    I('s_nop 7')
    I('s_nop 1')
    for tl, (mi, ni) in ((0, (0, 0)), (2, (1, 0)), (3, (1, 1)), (1, (0, 1))):
        for q in range(4):
            I('ds_write_b128 v8, %s offset:%d' % (vr(ACC + 32 * mi + 16 * ni + 4 * q, 4), tl * 4096 + q * 1024))
    I('v_add_u32 v7, 0x10000, v9')
    st.drain(vm=False)
    I('s_barrier')
    for w in range(4):
        for q in range(4):
            I('ds_read_b128 %s, v%d offset:%d' % (vr(ACC + 16 * w + 4 * q, 4), 9 if w < 2 else 7, (w % 2) * 32768 + q * 1024), ('R', w))
    st.need(vm='gb')
    unpack(I, 44, 20, 8)
    st.need(lg=('R', 1))
    for k in range(0, 16, 2):
        I('v_pk_add_f32 %s, %s, %s' % (vr(ACC + k, 2), vr(ACC + k, 2), vr(ACC + 16 + k, 2)))
    st.need(lg=('R', 3))
    for k in range(0, 16, 2):
        I('v_pk_add_f32 %s, %s, %s' % (vr(ACC + 32 + k, 2), vr(ACC + 32 + k, 2), vr(ACC + 48 + k, 2)))
    for k in range(0, 16, 2):
        I('v_pk_add_f32 %s, %s, %s' % (vr(ACC + k, 2), vr(ACC + k, 2), vr(ACC + 32 + k, 2)))
    for k in range(16):
        I('v_fmac_f32 v%d, v%d, v%d' % (44 + k, 28 + k, ACC + k))
    for k in range(8):
        I('v_cvt_pk_bf16_f32 v%d, v%d, v%d' % (20 + k, 44 + 2 * k, 45 + 2 * k))
    for t in range(2):
        I('buffer_store_dwordx4 %s, v19, s[24:27], 0 offen offset:%d' % (vr(20 + 4 * t, 4), 32 * t))
    stamps_end(st, opts, 'L_down_end', 20, 5, 6)
    p.label('L_down_end')
    I('s_endpgm')
    return finish(st, 'down')
```

```python
import sys, json
from asmlib import Prog
import attn, rest

HEADER = open('adaLN_cond__mha_block_cached__glu_gated_bilinear__prompt.s.ref').read().split('; Override launch')[0]

def kd(name, vgpr, acc, sgpr=96):
    return '''.p2align 6
.amdhsa_kernel %s
  .amdhsa_next_free_vgpr %d
  .amdhsa_next_free_sgpr %d
  .amdhsa_accum_offset %d
  .amdhsa_group_segment_fixed_size 0
  .amdhsa_kernarg_size 112
  .amdhsa_user_sgpr_count 2
  .amdhsa_user_sgpr_kernarg_segment_ptr 1
  .amdhsa_system_sgpr_workgroup_id_x 1
.end_amdhsa_kernel
''' % (name, vgpr, sgpr, acc)

def build(kernels):
    s = HEADER
    for name, prog, grid, block, lds, vgpr, acc in kernels:
        s += '; @launch kernel=%s grid=(%d,1,1) block=(%d,1,1) lds=%d\n' % (name, grid, block, lds)
    s += '.amdgcn_target "amdgcn-amd-amdhsa--gfx950"\n.text\n'
    for name, prog, grid, block, lds, vgpr, acc in kernels:
        s += '.globl %s\n.p2align 8\n.type %s,@function\n' % (name, name)
        s += prog.text()
    s += '.section .rodata,"a"\n'
    for name, prog, grid, block, lds, vgpr, acc in kernels:
        s += kd(name, vgpr, acc)
    return s

if __name__ == '__main__':
    out = sys.argv[1]
    opts = json.loads(sys.argv[2]) if len(sys.argv) > 2 else {}
    allk = {
        'mod': lambda: ('mod_kernel', rest.gen_mod(opts), 192, 256, 1024, 64, 64),
        'h': lambda: ('h_kernel', rest.gen_h(opts), 256, 256, 0, 64, 64),
        'attn': lambda: ('attn_kernel', attn.gen_attn(opts), 256, 256, 131072 + 256, 512, 256),
        'wo': lambda: ('wo_kernel', rest.gen_wo(opts), 256, 256, 131072, 192, 192),
        'ln2': lambda: ('ln2_kernel', rest.gen_ln2(opts), 256, 256, 256, 176, 176),
        'glu': lambda: ('glu_kernel', rest.gen_glu(opts), 256, 256, 4 * rest.GLU_SLOT, 328, 200),
        'down': lambda: ('down_kernel', rest.gen_down(opts), 256, 256, 131072, 288, 160),
    }
    names = opts.get('kernels', 'mod,h,attn,wo,ln2,glu,down').split(',')
    ks = [allk[n]() for n in names]
    open(out, 'w').write(build(ks))
```

```python
from common import *
from rest import unpack, dpp_add, rows_allreduce, tr_lane_terms, GLU_SLOT, GLU_U

KADDR = 1
VADDR = 9
VOFFK = 13
VOFFV = 17
LSUM = 18
MTRUE = 20
TMP = 22
QREG = 32
VOFFW = 96
VOFFH = 100
VOFFO = 101
VOFFO2 = 102
VOFFA = 108
VPF = 112
SREG = 128
PREG = 192
NEGM = 224
KF = 128
VF = 160

S_K, S_V, S_W, S_H, S_O = 4, 8, 12, 16, 20
S_KOFF, S_VOFF, S_WB, S_CNT, S_FLAG = 24, 25, 26, 27, 28
S_HOFF, S_WOFF = 29, 30
S_WAVE, S_POLL, S_LOC = 38, 39, 3
S_A, S_AOFF, S_PFOFF, S_HEAD, S_QT = 40, 44, 45, 46, 47
S_PF, S_FL, S_WS, S_X, S_WGU, S_WD, S_OUT = 48, 52, 56, 58, 96, 98, 100
LDS_MISC = 163328


def Q(qt, s): return QREG + 32 * qt + 4 * s
def S(b, qt): return SREG + 32 * b + 16 * qt
def P(b, qt, ks): return PREG + 16 * b + 8 * qt + 4 * ks
def QACC(dt, qt): return 128 + 32 * dt + 16 * qt
def O(dt, qt): return 32 * dt + 16 * qt


def hslot(H):
    s = H % 48
    return 4 * s if s < 32 else 192 + 4 * (s - 32)


def kread(slot, kt, s):
    return lambda st: st.I('ds_read_b128 %s, v%d offset:%d' % (ar(KF + 4 * s, 4), KADDR + s, slot * 16384 + kt * 8192),
                           ('K', s))


def vread(dst, slot, rowoff, dt, n, tag):
    return lambda st: st.I('ds_read_b64_tr_b16 %s, v%d offset:%d' % (
        ar(dst + 2 * n, 2), VADDR + dt, slot * 16384 + rowoff * 256 + n * 2048), tag)


def stampA(st, idx, opts):
    if not opts.get('st2'):
        stamp(st, idx, opts)


def stampB(st, idx, opts):
    if opts.get('st2'):
        stamp(st, idx, opts)


def T(text, tag=None):
    return lambda st: st.I(text, tag)


def dma_group(base_sgpr, ldsoff, voffs, srd_, soff, step, tag, extra=''):
    l = [T('s_add_u32 m0, s%d, %d' % (base_sgpr, ldsoff))]
    for i in range(4):
        l.append(T('buffer_load_dwordx4 v%d, s[%d:%d], s%d offen offset:%d%s lds' % (
            voffs[i], srd_, srd_ + 3, soff, i * 1024, extra), tag))
    l.append(T('s_add_u32 s%d, s%d, %d' % (soff, soff, step)))
    return l


def g_k(t, tag=None):
    return dma_group(S_WB, (t % 4) * 16384, [VOFFK + i for i in range(4)], S_K, S_KOFF, 16384, tag or ('K', t))


def g_v(t):
    return dma_group(S_WB, 65536 + (t % 4) * 16384, [VOFFV] * 4, S_V, S_VOFF, 16384, ('V', t))


def g_w(c):
    return dma_group(S_WB, 65536 + (c % 4) * 16384, [VOFFW + i for i in range(4)], S_W, S_WOFF, 64 * 8192, ('W', c))


def g_a(c):
    return dma_group(S_WB, (c % 4) * 16384, [VOFFA + i for i in range(4)], S_A, S_AOFF, 65536, ('A', c))


def place_group(sc, grp, gaps, prio=7):
    sc.add(gaps[0] - 1, grp[0], prio=9)
    for i, g in enumerate(gaps):
        sc.add(g, grp[1 + i], prio=prio)
    sc.add(gaps[-1], grp[-1], prio=prio + 1)


def run(st, grp):
    for f in grp:
        f(st)


def atoms(fn, *args):
    tmp = Stream()
    fn(tmp, *args)
    out = []
    for ins in tmp.p.insts():
        assert ins.kind in ('valu', 'salu'), ins.text
        if 'scc' in ins.reads:
            out[-1].append(ins.text)
        else:
            out.append([ins.text])
    return [(lambda st, l=l: [st.I(t) for t in l]) for l in out]


def touch(srd_, voff, soff, imm=0):
    return T('buffer_load_dword v112, v%d, s[%d:%d], %s offen offset:%d' % (voff, srd_, srd_ + 3, soff, imm), 'pf')


def signal(st, name, soff_sgpr, group_local):
    I = st.I
    I('v_mov_b32 v127, 1')
    if group_local:
        I('s_cmp_lg_u32 s%d, 0' % S_LOC)
        I('s_cbranch_scc1 L_sigl_' + name)
    I('s_mov_b64 exec, 1')
    I('buffer_store_dword v127, off, s[%d:%d], s%d sc1' % (S_FL, S_FL + 3, soff_sgpr), 'flag')
    if group_local:
        I('s_branch L_sigd_' + name)
        st.p.label('L_sigl_' + name)
        st.p.I('s_mov_b64 exec, 1')
        st.p.I('buffer_store_dword v127, off, s[%d:%d], s%d' % (S_FL, S_FL + 3, soff_sgpr))
        st.p.label('L_sigd_' + name)
    I('s_mov_b64 exec, -1')


def poll(st, name, voff, soff_sgpr, group_local, mod=' sc1', sleep=0):
    I = st.I
    I('s_mov_b32 s%d, 0' % S_POLL)
    st.p.label('L_poll_' + name)
    if sleep:
        I('s_sleep %d' % sleep)
    I('buffer_load_dword v126, v%d, s[%d:%d], s%d offen%s' % (voff, S_FL, S_FL + 3, soff_sgpr, mod), 'poll')
    I('s_add_u32 s%d, s%d, 1' % (S_POLL, S_POLL))
    st.drain(lg=False)
    I('v_cmp_ne_u32 vcc, 1, v126')
    I('s_cmp_ge_u32 s%d, 0x40000' % S_POLL)
    I('s_cbranch_scc1 L_polled_' + name)
    I('s_cbranch_vccnz L_poll_' + name)
    st.p.label('L_polled_' + name)
    if group_local:
        I('s_cmp_lg_u32 s%d, 0' % S_LOC)
        I('s_cbranch_scc1 L_acq_' + name)
        st.p.I('buffer_inv sc1')
        st.p.I('s_waitcnt vmcnt(0)')
        st.p.label('L_acq_' + name)


def maxops(b, qt, dst, first):
    r = S(b, qt)
    ops = []
    k = 0
    if first:
        ops.append('v_max3_f32 v%d, v%d, v%d, v%d' % (dst, r, r + 1, r + 2))
        ops.append('v_max_f32 v%d, v%d, v%d' % (dst, dst, r + 3))
        k = 4
    while k < 16:
        ops.append('v_max3_f32 v%d, v%d, v%d, v%d' % (dst, dst, r + k, r + k + 1))
        k += 2
    return ops


def wo_ids(I, opts, ks, mb, nt):
    I('s_bfe_u32 s%d, s2, 0x20001' % ks)
    I('s_and_b32 s%d, s2, 1' % mb)
    I('s_lshl_b32 s%d, s%d, 3' % (mb, mb))
    I('s_bfe_u32 s%d, s2, 0x30003' % nt)
    I('s_add_u32 s%d, s%d, s%d' % (mb, mb, nt))
    I('s_lshr_b32 s%d, s2, 6' % nt)


def attn_setup(st, opts):
    I = st.I
    I('s_load_dwordx4 s[4:7], s[0:1], 0')
    I('s_load_dwordx4 s[8:11], s[0:1], 16')
    I('s_load_dwordx2 s[40:41], s[0:1], 32')
    I('s_load_dwordx4 s[16:19], s[0:1], 48')
    I('s_load_dwordx2 s[%d:%d], s[0:1], 64' % (S_WD, S_WD + 1))
    I('s_load_dwordx2 s[%d:%d], s[0:1], 88' % (S_OUT, S_OUT + 1))
    I('s_load_dwordx2 s[%d:%d], s[0:1], 104' % (S_WS, S_WS + 1))
    stamps_begin(st, opts)
    la = 2
    I('s_and_b32 s32, s2, 7')
    I('s_lshr_b32 s33, s32, %d' % (3 - la))
    I('s_lshl_b32 s33, s33, %d' % (5 - la))
    I('s_lshr_b32 s34, s2, %d' % (3 + la))
    I('s_add_u32 s%d, s33, s34' % S_HEAD)
    I('s_and_b32 s32, s32, %d' % ((1 << (3 - la)) - 1))
    I('s_lshl_b32 s32, s32, %d' % la)
    I('s_lshr_b32 s34, s2, 3')
    I('s_and_b32 s34, s34, %d' % ((1 << la) - 1))
    I('s_add_u32 s%d, s32, s34' % S_QT)
    I('v_and_b32 v22, 63, v0')
    I('v_lshrrev_b32 v23, 6, v0')
    I('v_lshrrev_b32 v26, 4, v22')
    I('v_readfirstlane_b32 s%d, v23' % S_WAVE)
    I('v_and_b32 v25, 15, v22')
    I('v_lshlrev_b32 v28, 2, v26')
    I('v_xor_b32 v28, v25, v28')
    I('v_lshl_add_u32 v29, v23, 4, v26')
    I('v_lshlrev_b32 v30, 13, v29')
    I('v_lshl_add_u32 v%d, v28, 4, v30' % VOFFW)
    for i in range(1, 4):
        I('v_add_u32 v%d, %d, v%d' % (VOFFW + i, i * (4 * 8192 - 1024), VOFFW))
    I('v_lshlrev_b32 v30, 16, v23')
    I('v_lshl_add_u32 v%d, v22, 4, v30' % VOFFH)
    I('s_lshl_b32 s%d, s%d, 12' % (S_WB, S_WAVE))
    I('s_waitcnt lgkmcnt(0)')
    I('s_mov_b32 s%d, s4' % S_X)
    I('s_mov_b32 s%d, s5' % (S_X + 1))
    I('s_lshl_b32 s35, s%d, 8' % S_HEAD)
    I('s_sub_u32 s34, 4194304, s35')
    srd(I, S_W, 10, 's34', add='s35')
    I('s_cmp_lt_u32 s%d, 2' % S_WAVE)
    I('s_cselect_b32 s%d, s16, s18' % S_WGU)
    I('s_cselect_b32 s%d, s17, s19' % (S_WGU + 1))
    I('s_cmp_eq_u32 s%d, 3' % S_WAVE)
    I('s_cselect_b32 s32, s%d, s%d' % (S_WD, S_WGU))
    I('s_cselect_b32 s33, s%d, s%d' % (S_WD + 1, S_WGU + 1))
    I('s_cmp_eq_u32 s%d, 0' % S_WAVE)
    I('s_cselect_b32 s%d, s40, s32' % S_PF)
    I('s_cselect_b32 s%d, s41, s33' % (S_PF + 1))
    I('s_mov_b32 s32, 1835008')
    I('s_cselect_b32 s%d, 4194304, s32' % (S_PF + 2))
    I('s_mov_b32 s%d, 0x20000' % (S_PF + 3))
    I('s_lshl_b32 s35, s%d, 18' % S_QT)
    I('s_add_u32 s35, s35, %d' % WS_H)
    srd(I, S_H, S_WS, 8 * 32768, add='s35')
    I('s_mov_b32 s%d, 0' % S_WOFF)
    I('s_mov_b32 s%d, 0' % S_HOFF)
    I('s_mov_b32 s31, 32768')


def attn_setup2(st, opts):
    I = st.I
    I('s_lshl_b32 s35, s%d, 19' % S_HEAD)
    srd(I, S_K, 6, 524288, add='s35')
    srd(I, S_V, 8, 524288, add='s35')
    I('s_lshl_b32 s35, s%d, 21' % S_QT)
    I('s_lshl_b32 s34, s%d, 13' % S_HEAD)
    I('s_add_u32 s35, s35, s34')
    I('s_add_u32 s35, s35, %d' % WS_O)
    srd(I, S_O, S_WS, 8 * 262144, add='s35')
    srd(I, S_FL, S_WS, 17408 + 32768, add=str(WS_FLAGS))
    I('s_getreg_b32 s%d, hwreg(HW_REG_XCC_ID, 0, 4)' % S_LOC)
    I('s_and_b32 s35, s2, 7')
    I('s_lshl_b32 s35, s35, 5')
    I('s_lshr_b32 s34, s2, 3')
    I('s_add_u32 s35, s35, s34')
    I('s_lshl_b32 s35, s35, 2')
    I('s_add_u32 s35, s35, 16384')
    I('s_add_u32 s%d, s%d, 1' % (S_LOC, S_LOC))
    I('s_mov_b32 s%d, s35' % S_POLL)
    wo_ids(I, opts, 35, 33, 34)
    I('s_lshl_b32 s35, s35, 20')
    I('s_lshl_b32 s34, s34, 8')
    I('s_add_u32 s35, s35, s34')
    I('s_sub_u32 s34, 4194304, s35')
    srd(I, S_A, S_A, 's34', add='s35')
    for s_ in (S_KOFF, S_VOFF, S_FLAG, S_AOFF):
        I('s_mov_b32 s%d, 0' % s_)
    I('s_lshl_b32 s%d, s2, 12' % S_PFOFF)
    I('v_lshlrev_b32 v%d, 6, v22' % (VPF + 1))
    I('v_lshlrev_b32 v30, 10, v29')
    I('v_lshl_add_u32 v%d, v28, 4, v30' % VOFFA)
    for i in range(1, 4):
        I('v_add_u32 v%d, %d, v%d' % (VOFFA + i, i * 3072, VOFFA))
    I('v_lshrrev_b32 v24, 5, v22')
    I('v_lshlrev_b32 v27, 12, v23')
    I('v_lshl_add_u32 v27, v26, 8, v27')
    I('v_lshl_add_u32 v%d, v28, 4, v27' % VOFFV)
    I('v_xor_b32 v28, v25, v26')
    I('v_lshl_add_u32 v%d, v28, 4, v27' % VOFFK)
    for i in range(1, 4):
        I('v_xor_b32 v%d, %d, v%d' % (VOFFK + i, i << 6, VOFFK))
    I('v_and_b32 v27, 31, v22')
    I('v_lshlrev_b32 v27, 8, v27')
    I('v_xor_b32 v28, v24, v25')
    I('v_lshl_add_u32 v%d, v28, 4, v27' % KADDR)
    for s in range(1, 8):
        I('v_xor_b32 v%d, %d, v%d' % (KADDR + s, s << 5, KADDR))
    I('v_lshrrev_b32 v27, 2, v25')
    I('v_lshl_add_u32 v28, v24, 2, v27')
    I('v_lshlrev_b32 v28, 8, v28')
    I('v_lshl_add_u32 v28, v27, 6, v28')
    I('v_and_b32 v29, 1, v26')
    I('v_lshl_add_u32 v28, v29, 5, v28')
    I('v_and_b32 v29, 1, v22')
    I('v_lshl_add_u32 v28, v29, 4, v28')
    I('v_bfe_u32 v29, v22, 1, 1')
    I('v_lshl_add_u32 v28, v29, 3, v28')
    I('v_add_u32 v%d, 0x10000, v28' % VADDR)
    for dt in range(1, 4):
        I('v_xor_b32 v%d, %d, v%d' % (VADDR + dt, dt << 6, VADDR))
    I('v_lshlrev_b32 v29, 19, v23')
    I('v_lshl_add_u32 v%d, v22, 4, v29' % VOFFO)
    I('v_add_u32 v%d, 4096, v%d' % (VOFFO2, VOFFO))


def qproj(st, opts):
    I = st.I
    LEAD = opts.get('lead', 12)

    def hloads(c):
        l = []
        for ks in range(4):
            for qt in range(2):
                H = c * 8 + ks * 2 + qt
                l.append(T('buffer_load_dwordx4 %s, v%d, s[%d:%d], s%d offen offset:%d' % (
                    ar(hslot(H), 4), VOFFH, S_H, S_H + 3, 31 if qt else S_HOFF, ks * 1024), ('H', H)))

        def adv(st):
            st.I('s_add_u32 s%d, s%d, 4096' % (S_HOFF, S_HOFF))
            st.I('s_add_u32 s31, s31, 4096')
        return l, adv
    stampA(st, 1, opts)
    for c in range(2):
        run(st, g_w(c))
        l, adv = hloads(c)
        run(st, l)
        adv(st)
        if c == 0:
            attn_setup2(st, opts)
    sc = Sched()
    frags = []
    for c in range(8):
        if c < 7:
            frags += [(c, ks, dt) for ks in range(4) for dt in range(4)]
        else:
            frags += [(c, ks, dt) for dt in range(4) for ks in range(4)]
    for F, (c, ks, dt) in enumerate(frags):
        for n in range(2):
            sc.add(2 * F - LEAD + n, vread(128 + 4 * (F % 16), c % 4, ks * 16, dt, n, ('WF', F)), prio=6)
    for c in range(8):
        def bar(st, c=c):
            st.need(vm=('W', c))
            st.I('s_barrier')
        sc.add(32 * c - LEAD, bar, prio=0)
        g0 = 32 * c - LEAD + 1
        t = c + 2
        place_group(sc, g_w(t) if t < 8 else g_v(t - 8), [g0 + 2 * k for k in range(4)])
        g0 += 8
        if t < 8:
            l, adv = hloads(t)
            for k, f in enumerate(l):
                sc.add(g0 + 2 * k, f, prio=7)
            sc.add(g0 + 14, adv, prio=8)
            g0 += 16
        if c >= 5:
            place_group(sc, g_k(c - 5), [g0 + 2 * k for k in range(4)])
    for dt in range(4):
        k = 0
        for qt in range(2):
            for t in range(2):
                for d in range(4):
                    src = QACC(dt, qt) + 8 * t + 2 * d
                    sc.add(224 + 8 * dt + 11 + k // 2,
                           T('v_cvt_pk_bf16_f32 v%d, v%d, v%d' % (Q(qt, 2 * dt + t) + d, src, src + 1)), prio=4)
                    k += 1

    def bark0(st):
        st.need(vm=('K', 0))
        st.I('s_barrier')
    sc.add(242, bark0, prio=0)
    for s in range(8):
        sc.add(242 + s, kread(0, 0, s), prio=6)
    sc.flush_upto(st, -1)
    stampA(st, 2, opts)
    for F, (c, ks, dt) in enumerate(frags):
        for qt in range(2):
            g = 2 * F + qt
            if qt == 0 and F % 4 == 0:
                st.need(lg=('WF', min(F + 3, 127)))
            H = c * 8 + ks * 2 + qt
            st.need(lg=('WF', F), vm=('H', H))
            acc = QACC(dt, qt)
            I('%s %s, %s, %s, %s' % (MF, vr(acc, 16), ar(128 + 4 * (F % 16), 4), ar(hslot(H), 4),
                                    '0' if (c == 0 and ks == 0) else vr(acc, 16)))
            if g == 255:
                sc.flush_upto(st, 257)
                I('s_nop 7')
                sc.flush_upto(st, 300)
            else:
                run(st, sc.pop(g))
    assert not sc.fill
    stampA(st, 3, opts)
    I('s_nop 1')


def attn_main(st, opts):
    I = st.I
    BIAS = opts.get('bias', 100.0)
    EXP0 = opts.get('exp0', 18)
    st.p.label('L_attn_first')
    st.mark('first')
    I('v_mov_b32 v%d, 0' % LSUM)
    I('v_mov_b32 v%d, 0' % (LSUM + 1))
    sc = Sched()

    def G(u): return 32 * (u - 1)

    def softmax(u):
        b = u % 2
        for e in range(32):
            blk = e // 8
            qt, ks = blk % 2, blk // 2
            r = S(b, qt) + 8 * ks + e % 8
            g = G(u) + EXP0 + e
            sc.add(g, T('v_exp_f32 v%d, v%d' % (r, r)), prio=2)
            sc.add(g + 1, T('v_add_f32 v%d, v%d, v%d' % (LSUM + qt, LSUM + qt, r)), prio=3)
            if e % 2:
                sc.add(g + 1, T('v_cvt_pk_bf16_f32 v%d, v%d, v%d' % (P(b, qt, ks) + (e % 8) // 2, r - 1, r)), prio=4)

    KG = opts.get('kgaps', [1, 3, 5, 7, 9, 11, 12, 13])
    DG = opts.get('dgaps', [1, 5, 9, 13])
    for u in range(64):
        softmax(u)
        t, kt = u // 2, u % 2
        for f in range(8):
            ks, dt = f // 4, f % 4
            for n in range(2):
                sc.add(G(u) + 32 + 2 * f + n, vread(VF + 4 * f, t % 4, kt * 32 + ks * 16, dt, n, ('VF', f)), prio=6)
        if u >= 2:
            for s in range(8):
                sc.add(G(u) - 16 + KG[s], kread(t % 4, kt, s), prio=6)
    for s in range(8):
        sc.add(-16 + 2 * s + 1, kread(0, 1, s), prio=6)
    for j in range(32):
        def bar(st, j=j):
            if j + 1 < 32:
                st.need(vm=('K', j + 1))
            st.need(vm=('V', j))
            st.I('s_barrier')
        sc.add(64 * j - 1, bar, prio=8)
        if j + 2 < 32:
            place_group(sc, g_v(j + 2), [64 * j + 16 + d for d in DG])
        place_group(sc, g_k(j + 3) if j + 3 < 32 else g_a(j + 3 - 32), [64 * j + 48 + d for d in DG])
        if j % 4 == 1 and j < 29 and opts.get('warm', 1):
            sc.add(64 * j + 35, T('buffer_load_dword v%d, v%d, s[%d:%d], s%d offen' % (VPF, VPF + 1, S_PF, S_PF + 3, S_PFOFF), 'pf'), prio=7)
            sc.add(64 * j + 37, T('s_add_u32 s%d, s%d, 0x100000' % (S_PFOFF, S_PFOFF)), prio=7)

    if opts.get('l2pf', 1):
        def pfbase(st):
            st.I('s_lshr_b32 s32, s2, 3')
            st.I('s_mul_i32 s33, s32, 28672')
            st.I('s_lshl_b32 s32, s32, 15')
            st.I('s_bfe_u32 s34, s2, 0x20001')
            st.I('s_lshl_b32 s34, s34, 20')
            st.I('s_add_u32 s32, s32, s34')
            st.I('s_cmp_eq_u32 s%d, 0' % S_WAVE)
            st.I('s_cselect_b32 s32, s32, s33')
            st.I('s_cmp_eq_u32 s%d, 3' % S_WAVE)
            st.I('s_cselect_b32 s%d, 0x7000000, s32' % S_PFOFF)
        j0 = opts.get('l2pf_body', 29)
        sc.add(64 * j0 + 1, pfbase, prio=7)
        for k in range(8):
            g = 64 * j0 + 5 + opts.get('l2pf_step', 16) * k
            sc.add(g, T('buffer_load_dword v%d, v%d, s[%d:%d], s%d offen' % (VPF, VPF + 1, S_PF, S_PF + 3, S_PFOFF), 'pf'), prio=7)
            sc.add(g + 2, T('s_add_u32 s%d, s%d, 4096' % (S_PFOFF, S_PFOFF)), prio=7)

    def qk(u, g0, raw=False, extra=None):
        b = u % 2
        for s in range(8):
            for qt in range(2):
                if qt == 0 and s in (0, 4):
                    st.need(lg=('K', s + 3))
                st.need(lg=('K', s))
                c = vr(S(b, qt), 16) if s else ('0' if raw else vr(NEGM + 16 * qt, 16))
                I('%s %s, %s, %s, %s' % (MF, vr(S(b, qt), 16), ar(KF + 4 * s, 4), vr(Q(qt, s), 4), c))
                run(st, (extra.get(2 * s + qt, []) if extra else []) + sc.pop(g0 + 2 * s + qt))

    def pv(u, g0):
        b = u % 2
        for f in range(8):
            ks, dt = f // 4, f % 4
            for qt in range(2):
                if qt == 0 and f in (0, 4):
                    st.need(lg=('VF', f + 3))
                st.need(lg=('VF', f))
                c = '0' if (u == 0 and ks == 0) else ar(O(dt, qt), 16)
                I('%s %s, %s, %s, %s' % (MF, ar(O(dt, qt), 16), ar(VF + 4 * f, 4), vr(P(b, qt, ks), 4), c))
                run(st, sc.pop(g0 + 2 * f + qt))

    held = []
    for g in sorted(k for k in sc.fill if k < 16):
        keep = []
        for ent in sc.fill[g]:
            if ent[0] in (2, 3, 4):
                held.append((g, ent))
            else:
                keep.append(ent)
        sc.fill[g] = keep
    qk(0, -16, raw=True)
    extra = {}
    m0 = maxops(0, 0, TMP, True)
    m1 = maxops(0, 1, TMP + 1, True)
    for k in range(8):
        extra[4 + k] = [T(m0[k]), T(m1[k])]
    st.mark('body0')
    qk(1, 0, raw=True, extra=extra)
    I('s_nop 7')
    I('s_nop 1')
    for a, b_ in zip(maxops(1, 0, TMP, False), maxops(1, 1, TMP + 1, False)):
        I(a)
        I(b_)
    I('v_mov_b32 v%d, v%d' % (TMP + 2, TMP))
    I('v_mov_b32 v%d, v%d' % (TMP + 3, TMP + 1))
    I('s_nop 1')
    I('v_permlane32_swap_b32 v%d, v%d' % (TMP, TMP + 2))
    I('v_permlane32_swap_b32 v%d, v%d' % (TMP + 1, TMP + 3))
    I('s_cmp_eq_u32 s%d, 0' % S_FLAG)
    I('s_cselect_b64 vcc, -1, 0')
    I('v_max_f32 v%d, v%d, v%d' % (TMP, TMP, TMP + 2))
    I('v_max_f32 v%d, v%d, v%d' % (TMP + 1, TMP + 1, TMP + 3))
    I('v_add_f32 v%d, 0x%08x, v%d' % (TMP, f32bits(BIAS), TMP))
    I('v_add_f32 v%d, 0x%08x, v%d' % (TMP + 1, f32bits(BIAS), TMP + 1))
    I('v_cndmask_b32 v%d, v%d, v%d, vcc' % (TMP, MTRUE, TMP))
    I('v_cndmask_b32 v%d, v%d, v%d, vcc' % (TMP + 1, MTRUE + 1, TMP + 1))
    I('v_sub_f32 v%d, 0, v%d' % (TMP + 4, TMP))
    I('v_sub_f32 v%d, 0, v%d' % (TMP + 5, TMP))
    I('v_sub_f32 v%d, 0, v%d' % (TMP + 6, TMP + 1))
    I('v_sub_f32 v%d, 0, v%d' % (TMP + 7, TMP + 1))
    for b in range(2):
        for qt in range(2):
            for k in range(0, 16, 2):
                r = S(b, qt) + k
                I('v_pk_add_f32 %s, %s, %s' % (vr(r, 2), vr(r, 2), vr(TMP + 4 + 2 * qt, 2)))
    for qt in range(2):
        for k in range(0, 16, 2):
            I('v_mov_b64 %s, %s' % (vr(NEGM + 16 * qt + k, 2), vr(TMP + 4 + 2 * qt, 2)))
    I('s_mov_b64 exec, 1')
    I('v_mov_b32 v127, s%d' % S_LOC)
    I('buffer_store_dword v127, off, s[%d:%d], s%d sc1' % (S_FL, S_FL + 3, S_POLL), 'xcc')
    I('s_mov_b64 exec, -1')
    held.sort(key=lambda t: (t[0], t[1][0], t[1][1]))
    for g, ent in held:
        ent[2](st)
    I('s_nop 1')
    stampA(st, 4, opts)
    for j in range(32):
        if j > 0:
            st.mark('body%d' % j)
            qk(2 * j + 1, 64 * j)
        pv(2 * j, 64 * j + 16)
        if j < 31:
            qk(2 * j + 2, 64 * j + 32)
        else:
            sc.flush_upto(st, 64 * j + 47)
            I('s_nop 1')
        pv(2 * j + 1, 64 * j + 48)
    st.mark('epi')
    assert not any(sc.fill.values()), sorted(sc.fill)
    stamp(st, 5, opts)
    I('v_mov_b32 v%d, v%d' % (TMP, LSUM))
    I('v_mov_b32 v%d, v%d' % (TMP + 1, LSUM + 1))
    I('v_mov_b32 v%d, 0' % (TMP + 8))
    I('v_mov_b32 v%d, 0' % (TMP + 9))
    I('v_permlane32_swap_b32 v%d, v%d' % (TMP, LSUM))
    I('v_permlane32_swap_b32 v%d, v%d' % (TMP + 1, LSUM + 1))
    I('s_mov_b32 s31, 262144')
    I('v_add_f32 v%d, v%d, v%d' % (TMP, TMP, LSUM))
    I('v_add_f32 v%d, v%d, v%d' % (TMP + 1, TMP + 1, LSUM + 1))
    I('v_rcp_f32 v%d, v%d' % (TMP + 4, TMP))
    I('v_rcp_f32 v%d, v%d' % (TMP + 6, TMP + 1))
    I('v_mul_f32 v%d, 0x43800000, v%d' % (TMP + 2, TMP))
    I('v_mul_f32 v%d, 0x43800000, v%d' % (TMP + 3, TMP + 1))
    I('v_mul_f32 v%d, 0, v%d' % (TMP + 2, TMP + 2))
    I('v_mul_f32 v%d, 0, v%d' % (TMP + 3, TMP + 3))
    I('v_mov_b32 v%d, v%d' % (TMP + 5, TMP + 4))
    I('v_mov_b32 v%d, v%d' % (TMP + 7, TMP + 6))
    k = 0
    for dt in range(4):
        for qt in range(2):
            for t in range(2):
                src = O(dt, qt) + 8 * t
                tb = 128 + 8 * (k % 8)
                ob = 192 + 4 * (k % 8)
                for r in range(8):
                    I('v_accvgpr_read_b32 v%d, a%d' % (tb + r, src + r))
                for r in range(0, 8, 2):
                    I('v_pk_mul_f32 %s, %s, %s' % (vr(tb + r, 2), vr(tb + r, 2), vr(TMP + 4 + 2 * qt, 2)))
                for r in range(0, 8, 2):
                    I('v_cvt_pk_bf16_f32 v%d, v%d, v%d' % (ob + r // 2, tb + r, tb + r + 1))
                f = 2 * dt + t
                I('buffer_store_dwordx4 %s, v%d, s[%d:%d], %s offen offset:%d%s' % (
                    vr(ob, 4), VOFFO if f < 4 else VOFFO2, S_O, S_O + 3, 's31' if qt else '0', (f % 4) * 1024, opts.get('osc', ' sc1')), 'O')
                for r in range(0, 8, 2):
                    I('v_pk_fma_f32 %s, %s, %s, %s' % (vr(TMP + 2, 2), vr(tb + r, 2), vr(TMP + 8, 2), vr(TMP + 2, 2)))
                k += 1
    I('v_add_f32 v%d, v%d, v%d' % (TMP + 2, TMP + 2, TMP + 3))
    I('s_lshl_b32 s33, s%d, 2' % S_WAVE)
    I('v_cmp_u_f32 vcc, v%d, v%d' % (TMP + 2, TMP + 2))
    if opts.get('force_fallback'):
        I('s_mov_b64 vcc, -1')
    I('s_add_u32 s33, s33, %d' % LDS_MISC)
    I('s_cmp_lg_u64 vcc, 0')
    I('s_cselect_b32 s32, 1, 0')
    I('v_mov_b32 v%d, s33' % (TMP + 1))
    I('v_mov_b32 v%d, s32' % TMP)
    I('ds_write_b32 v%d, v%d' % (TMP + 1, TMP), 'flag')
    I('v_mov_b32 v%d, %d' % (TMP + 1, LDS_MISC))
    st.drain(vm=False)
    I('s_barrier')
    I('ds_read_b128 %s, v%d' % (vr(TMP + 4, 4), TMP + 1), 'flag')


def attn_decide(st, opts):
    I = st.I
    st.drain(vm=False)
    I('v_or3_b32 v%d, v%d, v%d, v%d' % (TMP + 4, TMP + 4, TMP + 5, TMP + 6))
    I('v_or_b32 v%d, v%d, v%d' % (TMP + 4, TMP + 4, TMP + 7))
    I('s_nop 0')
    I('v_readfirstlane_b32 s32, v%d' % (TMP + 4))
    I('s_nop 3')
    I('s_andn2_b32 s32, s32, s%d' % S_FLAG)
    I('s_cmp_lg_u32 s32, 0')
    I('s_cbranch_scc1 L_attn_fallback')
    st.mark('decided')


def attn_fallback(opts):
    st = Stream(); I = st.I
    st.p.label('L_attn_fallback')
    I('s_mov_b32 s%d, 1' % S_FLAG)
    I('s_mov_b32 s%d, 0' % S_KOFF)
    I('s_mov_b32 s%d, 0' % S_CNT)
    I('v_mov_b32 v%d, 0xff800000' % MTRUE)
    I('v_mov_b32 v%d, 0xff800000' % (MTRUE + 1))
    st.drain()
    st.p.label('L_attn_maxloop')
    st.mark('maxloop')
    I('s_barrier')
    run(st, g_k(0, 'fbk'))
    st.drain()
    I('s_barrier')
    for kt in range(2):
        for s in range(8):
            kread(0, kt, s)(st)
        st.drain(vm=False)
        for s in range(8):
            for qt in range(2):
                I('%s %s, %s, %s, %s' % (MF, vr(S(kt, qt), 16), ar(KF + 4 * s, 4), vr(Q(qt, s), 4),
                                        vr(S(kt, qt), 16) if s else '0'))
        I('s_nop 7')
        I('s_nop 7')
    for kt in range(2):
        for qt in range(2):
            for t in maxops(kt, qt, MTRUE + qt, False):
                I(t)
    I('s_add_u32 s%d, s%d, 1' % (S_CNT, S_CNT))
    I('s_cmp_lt_u32 s%d, 32' % S_CNT)
    I('s_cbranch_scc1 L_attn_maxloop')
    st.mark('maxloop_end')
    I('v_mov_b32 v%d, v%d' % (TMP + 2, MTRUE))
    I('v_mov_b32 v%d, v%d' % (TMP + 3, MTRUE + 1))
    I('s_nop 1')
    I('v_permlane32_swap_b32 v%d, v%d' % (MTRUE, TMP + 2))
    I('v_permlane32_swap_b32 v%d, v%d' % (MTRUE + 1, TMP + 3))
    for s_ in (S_KOFF, S_VOFF, S_AOFF):
        I('s_mov_b32 s%d, 0' % s_)
    I('v_max_f32 v%d, v%d, v%d' % (MTRUE, MTRUE, TMP + 2))
    I('v_max_f32 v%d, v%d, v%d' % (MTRUE + 1, MTRUE + 1, TMP + 3))
    I('s_barrier')
    for t in range(3):
        run(st, g_k(t, 'fbk'))
    for t in range(2):
        run(st, g_v(t))
    st.drain()
    I('s_barrier')
    for s in range(8):
        kread(0, 0, s)(st)
    st.drain()
    I('s_branch L_attn_first')
    return st


G_SLOT = [131072, 0, 65536, 32768]
D_SLOT = [98304, 131072, 0, 65536]
GL_A, GL_OFF, GL_B, GL_HH = 1, 4, 11, 12


def wo_setup(st, opts):
    I = st.I
    I('v_and_b32 v114, 63, v0')
    I('v_lshrrev_b32 v115, 6, v0')
    I('v_and_b32 v120, 31, v114')
    I('v_lshlrev_b32 v123, 2, v120')
    I('s_and_b32 s35, s2, 7')
    I('s_lshl_b32 s35, s35, 7')
    I('s_add_u32 s35, s35, 16384')
    I('buffer_load_dword v125, v123, s[%d:%d], s35 offen sc1' % (S_FL, S_FL + 3), 'xcct')
    I('v_lshlrev_b32 v124, 2, v114')
    tr_lane_terms(I, 114, 116, 117, 118)
    I('v_lshl_add_u32 v120, v116, 3, v117')
    I('v_lshlrev_b32 v120, 8, v120')
    I('v_and_b32 v121, 1, v115')
    I('v_lshlrev_b32 v122, 1, v121')
    I('v_xor_b32 v122, v122, v117')
    I('v_lshl_add_u32 v120, v122, 6, v120')
    I('v_lshl_add_u32 v120, v119, 5, v120')
    I('v_add_u32 v103, v120, v118')
    I('v_xor_b32 v104, 64, v103')
    I('v_lshrrev_b32 v120, 1, v115')
    I('v_lshlrev_b32 v122, 13, v120')
    I('v_lshl_add_u32 v122, v114, 4, v122')
    I('v_add_u32 v105, 0x10000, v122')
    I('v_lshlrev_b32 v122, 18, v115')
    I('v_lshl_add_u32 v106, v114, 4, v122')
    I('v_lshlrev_b32 v120, 16, v120')
    I('v_lshl_add_u32 v120, v121, 12, v120')
    I('v_lshl_add_u32 v107, v114, 4, v120')


def glu_w(c):
    l = [T('s_add_u32 m0, s29, %d' % G_SLOT[c % 4])]
    for i in range(7):
        if i == 4:
            l.append(T('s_add_u32 m0, s29, %d' % (G_SLOT[c % 4] + 4096)))
        l.append(T('buffer_load_dwordx4 v%d, s[4:7], s28 offen offset:%d lds' % (GL_OFF + i, (i % 4) * 1024), ('G', c)))
    l.append(T('s_add_u32 s28, s28, %d' % (64 * 3584)))
    return l


def glu_ln2_setup(st, opts):
    I = st.I
    I('s_lshr_b32 s47, s2, 4')
    I('s_and_b32 s46, s2, 7')
    I('s_lshl_b32 s46, s46, 1')
    I('s_bfe_u32 s34, s2, 0x10003')
    I('s_add_u32 s46, s46, s34')
    I('v_and_b32 v13, 1, v115')
    I('v_lshlrev_b32 v13, 5, v13')
    for i in range(7):
        I('v_add_u32 v12, %d, v114' % (64 * i))
        I('v_mul_u32_u24 v14, 4682, v12')
        I('v_lshrrev_b32 v14, 16, v14')
        I('v_mul_u32_u24 v15, 14, v14')
        I('v_sub_u32 v12, v12, v15')
        I('v_add_u32 v14, v14, v13')
        I('v_mul_u32_u24 v14, 3584, v14')
        I('v_lshl_add_u32 v14, v12, 4, v14')
        I('v_subrev_u32 v%d, %d, v14' % (GL_OFF + i, (i % 4) * 1024))
    I('s_lshr_b32 s29, s%d, 1' % S_WAVE)
    I('s_mul_i32 s29, s29, %d' % GLU_U)
    I('s_and_b32 s34, s%d, 1' % S_WAVE)
    I('s_mul_i32 s34, s34, 7168')
    I('s_add_u32 s29, s29, s34')
    I('s_mul_i32 s34, s47, 224')
    I('s_sub_u32 s35, 1835008, s34')
    srd(I, 4, S_WGU, 's35', add='s34')
    I('s_mov_b32 s28, 0')
    I('v_lshl_add_u32 v12, v116, 3, v117')
    I('v_mul_u32_u24 v12, 224, v12')
    I('v_mul_u32_u24 v13, %d, v119' % GLU_U)
    I('v_add3_u32 v%d, v12, v13, v118' % GL_A)
    I('v_add_u32 v%d, 0x10000, v%d' % (GL_A + 1, GL_A))
    I('v_add_u32 v%d, 0x20000, v%d' % (GL_A + 2, GL_A))
    I('v_lshlrev_b32 v12, 15, v115')
    I('v_lshl_add_u32 v%d, v114, 4, v12' % GL_B)
    I('v_mul_u32_u24 v12, 112, v115')
    I('v_lshlrev_b32 v12, 10, v12')
    I('v_lshl_add_u32 v%d, v114, 4, v12' % GL_HH)
    I('s_and_b32 s20, s2, 7')
    I('s_lshl_b32 s20, s20, 5')
    I('s_lshr_b32 s34, s2, 3')
    I('s_add_u32 s20, s20, s34')
    I('v_and_b32 v13, 7, v114')
    I('v_bfe_u32 v14, v114, 3, 1')
    I('v_lshrrev_b32 v15, 4, v114')
    I('v_lshl_add_u32 v15, v115, 3, v15')
    I('s_and_b32 s34, s20, 3')
    I('s_lshl_b32 s34, s34, 3')
    I('v_add_u32 v16, s34, v13')
    I('v_lshl_add_u32 v16, v14, 5, v16')
    I('v_lshlrev_b32 v16, 4, v16')
    I('v_lshl_add_u32 v18, v15, 10, v16')
    I('v_add_u32 v22, 4096, v18')
    I('v_lshlrev_b32 v19, 5, v15')
    I('v_lshl_add_u32 v19, v14, 4, v19')
    I('v_lshlrev_b32 v20, 1, v19')
    I('s_lshl_b32 s34, s20, 3')
    I('v_add_u32 v21, s34, v13')
    I('v_lshl_add_u32 v19, v21, 10, v19')
    I('v_add_u32 v23, 4096, v20')
    I('v_add_u32 v21, 8192, v20')
    I('v_lshlrev_b32 v16, 3, v13')
    I('v_add_u32 v16, %d, v16' % (LDS_MISC + 64))
    I('v_lshl_add_u32 v17, v115, 6, v16')
    srd(I, 8, S_X, 2097152)
    srd(I, 48, S_WS, 12288)


def wo_late_setup(st, opts):
    I = st.I
    I('s_lshl_b32 s32, s24, 21')
    I('s_lshl_b32 s33, s25, 17')
    I('s_add_u32 s32, s32, s33')
    I('s_lshl_b32 s33, s27, 13')
    I('s_add_u32 s32, s32, s33')
    I('s_add_u32 s32, s32, %d' % WS_PART)
    srd(I, 16, S_WS, 4 * 32768, add='s32')
    I('s_lshl_b32 s35, s25, 2')
    I('s_add_u32 s35, s35, s27')
    I('s_lshl_b32 s35, s35, 2')
    I('s_add_u32 s35, s35, s24')
    fb = opts.get('fb', 'wave')
    if fb == 'wave':
        I('s_lshl_b32 s35, s35, 2')
        I('s_add_u32 s35, s35, s%d' % S_WAVE)
        I('s_lshl_b32 s35, s35, 2')
        I('s_add_u32 s31, s35, 4096')
    elif fb == 'wg':
        I('s_lshl_b32 s35, s35, 4')
        I('s_add_u32 s31, s35, 4096')
        I('v_and_b32 v113, 15, v114')
        I('v_lshlrev_b32 v113, 4, v113')
    else:
        I('s_lshl_b32 s35, s35, 7')
        I('s_add_u32 s31, s35, 17408')
        I('v_and_b32 v113, 15, v114')
        I('v_lshlrev_b32 v113, 7, v113')
    I('s_mov_b32 s22, 32768')
    glu_ln2_setup(st, opts)


XB, GA, SB, CB = 24, 32, 48, 64


def ln2_static():
    l = [T('buffer_load_dwordx4 %s, v19, s[8:11], 0 offen offset:%d' % (vr(XB + 4 * i, 4), 128 * i), 'x') for i in range(2)]
    for (dst, va, off) in ((GA, 23, 0), (SB, 23, 2048), (CB, 21, 0)):
        for i in range(2):
            for q in range(2):
                l.append(T('buffer_load_dwordx4 %s, v%d, s[48:51], 0 offen offset:%d' % (
                    vr(dst + 8 * i + 4 * q, 4), va, off + 256 * i + 16 * q), 'static'))
    return l


def wo_phase(st, opts):
    I = st.I
    wo_ids(I, opts, 24, 25, 27)
    I('s_lshl_b32 s32, s%d, 5' % S_QT)
    I('s_add_u32 s32, s32, s%d' % S_HEAD)
    I('s_lshl_b32 s32, s32, 2')
    I('s_add_u32 s32, s32, s%d' % S_WAVE)
    I('s_lshl_b32 s32, s32, 2')
    st.need(vm='xcct')
    I('v_cmp_ne_u32 vcc, s%d, v125' % S_LOC)
    if opts.get('force_slow'):
        I('s_mov_b64 vcc, -1')
    I('s_cmp_eq_u64 vcc, 0')
    I('s_cselect_b32 s%d, 1, 0' % S_LOC)
    stamp(st, 6, opts)
    signal(st, 'a', 32, True)
    run(st, g_a(3))
    I('s_lshl_b32 s32, s25, 20')
    I('s_lshl_b32 s33, s24, 16')
    I('s_add_u32 s32, s32, s33')
    I('s_add_u32 s32, s32, %d' % WS_O)
    srd(I, 12, S_WS, 4 * 262144, add='s32')
    I('s_mov_b32 s23, 0')
    I('s_lshr_b32 s33, s25, 1')
    I('s_lshl_b32 s33, s33, 9')
    I('s_lshl_b32 s34, s24, 7')
    I('s_add_u32 s33, s33, s34')
    poll(st, 'a', 123, 33, True)
    stamp(st, 7, opts)
    NC = 16

    def g_b(c):
        return dma_group(S_WB, 65536 + (c % 4) * 16384, [106] * 4, 12, 23, 4096, ('B', c))
    for c in range(4):
        run(st, g_b(c))
    if opts.get('t_wo', 0):
        sh = opts.get('tsh', 7)
        I('v_lshlrev_b32 v113, 18, v115')
        I('v_lshl_add_u32 v113, v114, %d, v113' % sh)
        I('s_mul_i32 s32, s27, 12288')
        I('s_add_u32 s32, s32, 16384')
        for k in range(0, 12288, 64 << sh):
            if k + (64 << sh) > 12288:
                I('s_mov_b64 exec, 0xffffffff')
            touch(12, 113, 's32')(st)
            I('s_add_u32 s32, s32, %d' % (64 << sh))
        I('s_mov_b64 exec, -1')
    ACC, NS, FR = 128, 4, 192
    sc = Sched()
    for K in range(NC * 4):
        c, ks = K // 4, K % 4
        b = FR + 16 * (K % NS)
        g0 = 16 * c - 8
        rd = []
        for ni in range(2):
            for n in range(2):
                rd.append('ds_read_b64_tr_b16 %s, v%d offset:%d' % (vr(b + 4 * ni + 2 * n, 2), 103 + ni,
                                                                   (c % 4) * 16384 + ks * 4096 + n * 1024))
        for mi in range(2):
            rd.append('ds_read_b128 %s, v105 offset:%d' % (vr(b + 8 + 4 * mi, 4), (c % 4) * 16384 + mi * 4096 + ks * 1024))
        for k, t in enumerate([rd[0], rd[1], rd[4], rd[5], rd[2], rd[3]]):
            sc.add(g0 + 3 * ks + k // 2, T(t, ('F', K)), prio=6)
        if ks == 0:
            def bar(st, c=c):
                if c > 0:
                    st.need(lg=('F', 4 * c - 1))
                st.need(vm=('B', c))
                st.I('s_barrier')
            sc.add(g0, bar, prio=0)
            if 1 <= c and c + 3 < NC:
                place_group(sc, g_a(c + 3), [g0 + 1 + 2 * k for k in range(4)])
                place_group(sc, g_b(c + 3), [g0 + 9 + 2 * k for k in range(4)])
            extra = []
            gp = opts.get('gpre', 'b7')
            if c == 13:
                extra = ln2_static()
            if c == 14 and gp == 'wo':
                extra = glu_w(0) + glu_w(1)
            if c == 15 and gp == 'wo':
                extra = glu_w(2)
            if c == 14 and gp == 'wo1':
                extra = glu_w(0)
            for k, f in enumerate(extra):
                sc.add(g0 + 1 + (k * 15) // len(extra), f, prio=7)
    for k, f in enumerate(atoms(wo_late_setup, opts)):
        sc.add(4 + k, f, prio=5)
    sc.flush_upto(st, -1)
    stamp(st, 8, opts)
    for K in range(NC * 4):
        b = FR + 16 * (K % NS)
        st.need(lg=('F', K))
        for k, (mi, ni) in enumerate(((0, 0), (1, 0), (1, 1), (0, 1))):
            acc = ACC + 32 * mi + 16 * ni
            I('%s %s, %s, %s, %s' % (MF, vr(acc, 16), vr(b + 4 * ni, 4), vr(b + 8 + 4 * mi, 4), '0' if K == 0 else vr(acc, 16)))
            run(st, sc.pop(4 * K + k))
    assert not sc.fill
    stamp(st, 9, opts)
    I('s_nop 7')
    I('s_nop 0')
    k = 0
    for (mi, ni) in ((0, 0), (1, 0), (1, 1), (0, 1)):
        for t in range(2):
            src = ACC + 32 * mi + 16 * ni + 8 * t
            for d in range(4):
                I('v_cvt_pk_bf16_f32 v%d, v%d, v%d' % (192 + 4 * k + d, src + 2 * d, src + 2 * d + 1))
            I('buffer_store_dwordx4 %s, v107, s[16:19], %s offen offset:%d sc1' % (
                vr(192 + 4 * k, 4), 's22' if mi else '0', (2 * ni + t) * 1024), 'part')
            k += 1
    if opts.get('fb', 'wave') == 'wave':
        I('s_barrier')


def ln2_phase(st, opts):
    I = st.I
    X, PB, PR = 80, 128, 224
    I('s_lshr_b32 s21, s20, 2')
    I('s_lshl_b32 s32, s21, 15')
    I('s_add_u32 s33, s32, %d' % WS_PART)
    srd(I, 40, S_WS, 3 * 2097152 + 32768, add='s33')
    I('s_add_u32 s33, s32, %d' % WS_X1)
    srd(I, 12, S_WS, 32768, add='s33')
    I('s_add_u32 s33, s32, %d' % WS_H2)
    srd(I, 24, S_WS, 32768, add='s33')
    st.need(vm='static')
    unpack(I, X, XB, 8)
    for k in range(16):
        I('v_add_f32 v%d, 1.0, v%d' % (CB + k, CB + k))
    for k in range(8):
        I('v_cvt_pk_bf16_f32 v%d, v%d, v%d' % (XB + k, CB + 2 * k, CB + 2 * k + 1))
    unpack(I, CB, XB, 8)
    fb = opts.get('fb', 'wave')
    I('s_lshr_b32 s32, s20, 4')
    I('s_lshl_b32 s32, s32, %d' % (11 if fb == 'line' else 8))
    I('s_add_u32 s32, s32, %d' % (17408 if fb == 'line' else 4096))
    I('s_mov_b32 s33, 2097152')
    I('s_mov_b32 s34, 4194304')
    I('s_mov_b32 s35, 6291456')
    st.need(vm='part')
    stamp(st, 10, opts)
    if fb != 'wave':
        I('s_barrier')
        I('s_cmp_lg_u32 s%d, 0' % S_WAVE)
        I('s_cbranch_scc1 L_nosig_b')
        st.p.I('v_mov_b32 v127, 1')
        st.p.I('s_mov_b64 exec, 1')
        st.p.I('buffer_store_dword v127, off, s[%d:%d], s31 sc1' % (S_FL, S_FL + 3))
        st.p.I('s_mov_b64 exec, -1')
        st.p.label('L_nosig_b')
    else:
        signal(st, 'b', 31, False)
    gp = opts.get('gpre', 'b7')
    for c in {'wo': [3], 'b7': [0, 1, 2, 3], 'split': [0, 1], 'wo1': [1], 'none': []}[gp]:
        run(st, glu_w(c))
    I('s_lshl_b32 s31, s20, 2')
    I('s_add_u32 s31, s31, s%d' % S_WAVE)
    I('s_lshl_b32 s31, s31, 2')
    I('s_add_u32 s31, s31, 8192')
    if opts.get('poll1'):
        I('s_cmp_lg_u32 s%d, %d' % (S_WAVE, opts.get('pollw', 0)))
        I('s_cbranch_scc1 L_nopoll_b')
    poll(st, 'b', 124 if fb == 'wave' else 113, 32, False, opts.get('pollmod', ' sc1'), opts.get('pollsleep', 0))
    if opts.get('poll1'):
        st.p.label('L_nopoll_b')
        I('s_barrier')
        st.vm_done = len(st.vm) - 2 - 28
    stamp(st, 11, opts)
    if opts.get('stamps'):
        I('s_mov_b32 s59, s%d' % S_POLL)
    for i in range(2):
        for ks in range(4):
            I('buffer_load_dwordx4 %s, v%d, s[40:43], %s offen sc1' % (
                vr(PR + 16 * i + 4 * ks, 4), 22 if i else 18, ['0', 's33', 's34', 's35'][ks]), ('p', i))
    for c in {'split': [2, 3], 'wo1': [2, 3], 'none': [0, 1, 2, 3]}.get(gp, []):
        run(st, glu_w(c))
    for i in range(2):
        st.need(vm=('p', i))
        b = PB + 32 * i
        unpack(I, b, PR + 16 * i, 16)
        for k in range(0, 8, 2):
            I('v_pk_add_f32 %s, %s, %s' % (vr(b + k, 2), vr(b + k, 2), vr(b + 8 + k, 2)))
            I('v_pk_add_f32 %s, %s, %s' % (vr(b + 16 + k, 2), vr(b + 16 + k, 2), vr(b + 24 + k, 2)))
        for k in range(0, 8, 2):
            I('v_pk_add_f32 %s, %s, %s' % (vr(b + k, 2), vr(b + k, 2), vr(b + 16 + k, 2)))
        for k in range(0, 8, 2):
            I('v_pk_fma_f32 %s, %s, %s, %s' % (vr(X + 8 * i + k, 2), vr(GA + 8 * i + k, 2), vr(b + k, 2), vr(X + 8 * i + k, 2)))
    for k in range(8):
        I('v_cvt_pk_bf16_f32 v%d, v%d, v%d' % (XB + k, X + 2 * k, X + 2 * k + 1))
    unpack(I, X, XB, 8)
    I('v_pk_add_f32 v[96:97], %s, %s' % (vr(X, 2), vr(X + 2, 2)))
    I('v_pk_mul_f32 v[98:99], %s, %s' % (vr(X, 2), vr(X, 2)))
    I('v_pk_fma_f32 v[98:99], %s, %s, v[98:99]' % (vr(X + 2, 2), vr(X + 2, 2)))
    for k in range(4, 16, 2):
        I('v_pk_add_f32 v[96:97], v[96:97], %s' % vr(X + k, 2))
        I('v_pk_fma_f32 v[98:99], %s, %s, v[98:99]' % (vr(X + k, 2), vr(X + k, 2)))
    I('v_add_f32 v96, v96, v97')
    I('v_add_f32 v97, v98, v99')
    dpp_add(I, [96, 97], 'row_ror:8')
    rows_allreduce(I, [96, 97], 98)
    I('ds_write_b64 v17, v[96:97]')
    I('buffer_store_dwordx4 %s, v18, s[12:15], 0 offen sc1' % vr(XB, 4), 'x1')
    I('buffer_store_dwordx4 %s, v22, s[12:15], 0 offen sc1' % vr(XB + 4, 4), 'x1')
    st.drain(vm=False)
    I('s_barrier')
    for w in range(4):
        I('ds_read_b64 %s, v16 offset:%d' % (vr(128 + 2 * w, 2), 64 * w))
    st.drain(vm=False)
    I('v_pk_add_f32 v[128:129], v[128:129], v[130:131]')
    I('v_pk_add_f32 v[132:133], v[132:133], v[134:135]')
    I('v_pk_add_f32 v[128:129], v[128:129], v[132:133]')
    I('v_mul_f32 v128, 0x%08x, v128' % f32bits(-1.0 / 512))
    I('v_mul_f32 v129, 0x%08x, v129' % f32bits(1.0 / 512))
    I('v_fma_f32 v129, -v128, v128, v129')
    I('v_max_f32 v129, 0, v129')
    I('v_add_f32 v129, 0x%08x, v129' % f32bits(1e-5))
    I('v_rsq_f32 v130, v129')
    I('v_mov_b32 v129, v128')
    I('v_mov_b32 v131, v130')
    for k in range(0, 16, 2):
        I('v_pk_add_f32 %s, %s, v[128:129]' % (vr(X + k, 2), vr(X + k, 2)))
    for k in range(0, 16, 2):
        I('v_pk_mul_f32 %s, %s, v[130:131]' % (vr(X + k, 2), vr(X + k, 2)))
    for k in range(0, 16, 2):
        I('v_pk_fma_f32 %s, %s, %s, %s' % (vr(X + k, 2), vr(X + k, 2), vr(CB + k, 2), vr(SB + k, 2)))
    for k in range(8):
        I('v_cvt_pk_bf16_f32 v%d, v%d, v%d' % (136 + k, X + 2 * k, X + 2 * k + 1))
    I('buffer_store_dwordx4 v[136:139], v18, s[24:27], 0 offen sc1', 'h2')
    I('buffer_store_dwordx4 v[140:143], v22, s[24:27], 0 offen sc1', 'h2')


DN_OFF, DN_A, DN_B, DN_X1, DN_GB, DN_OUT = 13, 17, 23, 28, 29, 30


def down_a(c):
    l = []
    for h in range(2):
        l.append(T('s_add_u32 m0, s22, %d' % (D_SLOT[c % 4] + 4096 * h)))
        for i in range(4):
            l.append(T('buffer_load_dwordx4 v%d, s[40:43], s%d offen offset:%d lds' % (DN_OFF + i, 20 + h, i * 1024), ('DA', c)))
    l.append(T('s_add_u32 s20, s20, 65536'))
    l.append(T('s_add_u32 s21, s21, 65536'))
    return l


def down_setup(st, opts):
    I = st.I
    I('s_and_b32 s34, s2, 7')
    I('s_lshl_b32 s34, s34, 2')
    I('s_bfe_u32 s32, s2, 0x20003')
    I('s_add_u32 s34, s34, s32')
    I('s_lshr_b32 s35, s2, 5')
    I('v_lshrrev_b32 v96, 3, v114')
    I('v_and_b32 v97, 7, v114')
    I('v_bfe_u32 v98, v114, 4, 1')
    I('v_lshlrev_b32 v98, 2, v98')
    I('v_xor_b32 v97, v97, v98')
    I('v_mul_u32_u24 v98, 448, v115')
    I('v_add_u32 v96, v96, v98')
    I('v_lshlrev_b32 v96, 10, v96')
    I('v_lshl_add_u32 v%d, v97, 4, v96' % DN_OFF)
    for i in range(1, 4):
        I('v_add_u32 v%d, %d, v%d' % (DN_OFF + i, i * 7168, DN_OFF))
    I('s_lshl_b32 s22, s%d, 13' % S_WAVE)
    I('s_lshl_b32 s32, s35, 7')
    I('s_sub_u32 s33, 1835008, s32')
    srd(I, 40, S_WD, 's33', add='s32')
    I('s_mov_b32 s20, 0')
    I('s_mov_b32 s21, 32768')
    I('v_lshl_add_u32 v96, v116, 3, v117')
    I('v_lshlrev_b32 v96, 7, v96')
    I('v_lshrrev_b32 v97, 1, v117')
    I('v_lshl_add_u32 v96, v97, 6, v96')
    I('v_lshl_add_u32 v96, v119, 5, v96')
    I('v_lshl_add_u32 v96, v115, 13, v96')
    I('v_add_u32 v%d, v96, v118' % DN_A)
    I('v_xor_b32 v%d, 64, v%d' % (DN_A + 1, DN_A))
    for k in range(2, 6):
        I('v_add_u32 v%d, 0x10000, v%d' % (DN_A + k, DN_A + k - 2))
    I('v_mul_u32_u24 v96, 28672, v115')
    I('v_lshl_add_u32 v%d, v114, 4, v96' % DN_B)
    I('s_mul_i32 s32, s34, %d' % (2 * 112 * 1024))
    I('s_add_u32 s32, s32, %d' % WS_HH)
    srd(I, 12, S_WS, 2 * 112 * 1024, add='s32')
    I('s_lshl_b32 s32, s34, 16')
    I('s_lshl_b32 s33, s35, 12')
    I('s_add_u32 s33, s32, s33')
    I('s_add_u32 s33, s33, %d' % WS_X1)
    srd(I, 24, S_WS, 65536, add='s33')
    I('s_lshl_b32 s33, s35, 7')
    I('s_add_u32 s32, s32, s33')
    I('s_sub_u32 s33, 2097152, s32')
    srd(I, 96, S_OUT, 's33', add='s32')
    I('s_mov_b32 s44, 0')
    I('s_mov_b32 s45, %d' % (112 * 1024))
    I('s_lshr_b32 s30, s34, 1')
    I('s_lshl_b32 s30, s30, 8')
    I('s_add_u32 s30, s30, 12288')
    I('s_lshl_b32 s100, s35, 8')
    I('s_add_u32 s100, s100, %d' % (5 * 2048))


def down_setup2(st, opts):
    I = st.I
    I('v_lshrrev_b32 v96, 1, v115')
    I('v_and_b32 v97, 1, v115')
    I('v_lshlrev_b32 v98, 15, v96')
    I('v_lshl_add_u32 v98, v97, 11, v98')
    I('v_lshl_add_u32 v%d, v114, 4, v98' % DN_X1)
    I('v_lshlrev_b32 v98, 7, v97')
    I('v_lshl_add_u32 v%d, v116, 5, v98' % DN_GB)
    I('v_and_b32 v98, 31, v114')
    I('v_lshl_add_u32 v98, v96, 5, v98')
    I('v_lshlrev_b32 v98, 10, v98')
    I('v_lshrrev_b32 v%d, 1, v%d' % (DN_OUT, DN_GB))
    I('v_add_u32 v%d, v%d, v98' % (DN_OUT, DN_OUT))


def glu_phase(st, opts):
    I = st.I
    LEAD = opts.get('glu_lead', 6)
    I('s_lshl_b32 s32, s46, 17')
    I('s_add_u32 s32, s32, %d' % WS_H2)
    srd(I, 8, S_WS, 131072, add='s32')
    I('s_mul_i32 s32, s46, %d' % (4 * 112 * 1024))
    I('s_mul_i32 s33, s47, 7168')
    I('s_add_u32 s32, s32, s33')
    I('s_add_u32 s32, s32, %d' % WS_HH)
    srd(I, 16, S_WS, 4 * 112 * 1024, add='s32')
    I('s_mov_b32 s23, 0')
    down_setup(st, opts)
    I('s_lshl_b32 s32, s46, 8')
    I('s_add_u32 s32, s32, 8192')
    st.need(vm='h2')
    stamp(st, 12, opts)
    signal(st, 'c', 31, True)
    I('s_lshl_b32 s31, s46, 4')
    I('s_add_u32 s31, s31, s47')
    I('s_lshl_b32 s31, s31, 2')
    I('s_add_u32 s31, s31, s%d' % S_WAVE)
    I('s_lshl_b32 s31, s31, 2')
    I('s_add_u32 s31, s31, 12288')
    poll(st, 'c', 124, 32, True)
    stamp(st, 13, opts)

    def bl(c):
        l = [T('buffer_load_dwordx4 %s, v%d, s[8:11], s23 offen offset:%d' % (ar(16 * c + 4 * ks, 4), GL_B, ks * 1024),
               ('B', 4 * c + ks)) for ks in range(4)]
        return l + [T('s_add_u32 s23, s23, 4096')]
    NB0 = opts.get('glu_nb0', 4)
    for c in range(NB0):
        run(st, bl(c))
    down_setup2(st, opts)
    ACC, FR, NR = 128, 32, 16
    sc = Sched()
    NF = 8 * 28
    for F in range(NF):
        c, ks, t = F // 28, (F % 28) // 7, F % 7
        b = FR + 4 * (F % NR)
        g0 = 28 * c - LEAD
        base = G_SLOT[c % 4]
        for n in range(2):
            off = base % 65536 + ks * 16 * 224 + n * 4 * 224 + t * 32
            sc.add(g0 + ((F % 28) * 23) // 28, T('ds_read_b64_tr_b16 %s, v%d offset:%d' % (
                vr(b + 2 * n, 2), GL_A + base // 65536, off), ('F', F)), prio=6)
        if F % 28 == 0:
            def bar(st, c=c, F=F):
                if c > 0:
                    st.need(lg=('F', F - 1))
                st.need(vm=('G', c))
                st.I('s_barrier')
            sc.add(g0, bar, prio=0)
            its = []
            if c + NB0 < 8:
                its += bl(c + NB0)
            if 1 <= c and c + 3 < 8:
                its += glu_w(c + 3)
            nd = opts.get('dpre', 4)
            if c == opts.get('d0at', 0) and nd >= 1:
                its += down_a(0)
            if c >= 5 and c - 4 < nd:
                its += down_a(c - 4)
            for k, f in enumerate(its):
                sc.add(g0 + 1 + (k * min(26, 2 * len(its))) // len(its), f, prio=7)
    sc.flush_upto(st, -1)
    for F in range(NF):
        c, ks, t = F // 28, (F % 28) // 7, F % 7
        if F == 1:
            stampB(st, 1, opts)
        if F % 2 == 0:
            st.need(lg=('F', min(F + 1, NF - 1)))
        st.need(lg=('F', F), vm=('B', 4 * c + ks))
        acc = ACC + 16 * t
        I('%s %s, %s, %s, %s' % (MF, vr(acc, 16), vr(FR + 4 * (F % NR), 4), ar(16 * c + 4 * ks, 4),
                                '0' if F < 7 else vr(acc, 16)))
        run(st, sc.pop(F))
    assert not sc.fill
    stampB(st, 2, opts)
    I('v_add_u32 v31, 4096, v%d' % GL_HH)
    I('s_nop 4')
    for t in range(7):
        acc = ACC + 16 * t
        for k in range(0, 8, 2):
            I('v_pk_mul_f32 %s, %s, %s' % (vr(acc + k, 2), vr(acc + k, 2), vr(acc + 8 + k, 2)))
        for k in range(4):
            I('v_cvt_pk_bf16_f32 v%d, v%d, v%d' % (acc + 8 + k, acc + 2 * k, acc + 2 * k + 1))
        I('buffer_store_dwordx4 %s, v%d, s[16:19], 0 offen offset:%d sc1' % (
            vr(acc + 8, 4), GL_HH if t < 4 else 31, (t % 4) * 1024), 'hh')


def down_phase(st, opts):
    I = st.I
    LEAD = opts.get('down_lead', 2)
    NC = 7
    X1, GB, XU = 32, 40, 56

    def gb(c):
        l = []
        for ks in range(4):
            for mi in range(2):
                l.append(T('buffer_load_dwordx4 %s, v%d, s[12:15], s%d offen offset:%d' % (
                    ar(32 * (c % 4) + 8 * ks + 4 * mi, 4), DN_B, 45 if mi else 44, ks * 1024), ('DB', 4 * c + ks)))
        l.append(T('s_add_u32 s44, s44, 4096'))
        l.append(T('s_add_u32 s45, s45, 4096'))
        return l
    if opts.get('dpre', 4) < 4:
        I('s_barrier')
    st.need(vm='hh')
    stamp(st, 14, opts)
    signal(st, 'd', 31, True)
    poll(st, 'd', 124, 30, True)
    stampB(st, 3, opts)
    for c in range(4):
        if c >= opts.get('dpre', 4):
            run(st, down_a(c))
        run(st, gb(c))
    ACC, FR, NS = 128, 192, 4
    sc = Sched()
    for K in range(NC * 4):
        c, ks = K // 4, K % 4
        b = FR + 8 * (K % NS)
        g0 = 4 * (K - LEAD)
        base = D_SLOT[c % 4]
        if ks == 0:
            sc.add(g0, (lambda s_, c=c: s_.need(vm=('DA', c))), prio=0)
        for ni in range(2):
            for n in range(2):
                sc.add(g0 + 2 * ni + n, T('ds_read_b64_tr_b16 %s, v%d offset:%d' % (
                    vr(b + 4 * ni + 2 * n, 2), DN_A + 2 * (base // 65536) + ni, base % 65536 + ks * 2048 + n * 512), ('F', K)), prio=6)
        if ks == 0 and 1 <= c and c + 3 < NC:
            its = down_a(c + 3) + gb(c + 3)
            for k, f in enumerate(its):
                sc.add(4 * K + (k * 16) // len(its), f, prio=7)
    for t in range(2):
        sc.add(64 + t, T('buffer_load_dwordx4 %s, v%d, s[24:27], 0 offen offset:%d' % (vr(X1 + 4 * t, 4), DN_X1, 1024 * t), 'x1l'), prio=7)
    for q in range(4):
        sc.add(66 + q, T('buffer_load_dwordx4 %s, v%d, s[48:51], s100 offen offset:%d' % (
            vr(GB + 4 * q, 4), DN_GB, 64 * (q // 2) + 16 * (q % 2)), 'gb'), prio=7)
    sc.flush_upto(st, -1)
    for K in range(NC * 4):
        c, ks = K // 4, K % 4
        b = FR + 8 * (K % NS)
        st.need(lg=('F', K), vm=('DB', K))
        for k, (mi, ni) in enumerate(((0, 0), (1, 0), (1, 1), (0, 1))):
            acc = ACC + 32 * mi + 16 * ni
            I('%s %s, %s, %s, %s' % (MF, vr(acc, 16), vr(b + 4 * ni, 4), ar(32 * (c % 4) + 8 * ks + 4 * mi, 4),
                                    '0' if K == 0 else vr(acc, 16)))
            run(st, sc.pop(4 * K + k))
    assert not sc.fill
    stampB(st, 4, opts)
    I('v_lshlrev_b32 v1, 4, v114')
    I('v_lshl_add_u32 v2, v115, 13, v1')
    I('v_add_u32 v3, 0x10000, v2')
    I('v_and_b32 v4, 1, v115')
    I('v_lshl_add_u32 v4, v4, 12, v1')
    I('v_lshrrev_b32 v5, 1, v115')
    I('v_lshl_add_u32 v4, v5, 16, v4')
    I('s_nop 1')
    for tl, (mi, ni) in ((0, (0, 0)), (2, (1, 0)), (3, (1, 1)), (1, (0, 1))):
        for q in range(4):
            I('ds_write_b128 v%d, %s offset:%d' % (2 + tl // 2, vr(ACC + 32 * mi + 16 * ni + 4 * q, 4), (tl % 2) * 4096 + q * 1024))
    st.need(vm='gb')
    unpack(I, XU, X1, 8)
    st.drain(vm=False)
    I('s_barrier')
    for w in range(4):
        for q in range(4):
            I('ds_read_b128 %s, v4 offset:%d' % (vr(ACC + 16 * w + 4 * q, 4), w * 8192 + q * 1024), ('R', w))
    st.need(lg=('R', 1))
    for k in range(0, 16, 2):
        I('v_pk_add_f32 %s, %s, %s' % (vr(ACC + k, 2), vr(ACC + k, 2), vr(ACC + 16 + k, 2)))
    st.need(lg=('R', 3))
    for k in range(0, 16, 2):
        I('v_pk_add_f32 %s, %s, %s' % (vr(ACC + 32 + k, 2), vr(ACC + 32 + k, 2), vr(ACC + 48 + k, 2)))
    for k in range(0, 16, 2):
        I('v_pk_add_f32 %s, %s, %s' % (vr(ACC + k, 2), vr(ACC + k, 2), vr(ACC + 32 + k, 2)))
    for t in range(2):
        for k in range(8 * t, 8 * t + 8, 2):
            I('v_pk_fma_f32 %s, %s, %s, %s' % (vr(XU + k, 2), vr(GB + k, 2), vr(ACC + k, 2), vr(XU + k, 2)))
        for k in range(4 * t, 4 * t + 4):
            I('v_cvt_pk_bf16_f32 v%d, v%d, v%d' % (X1 + k, XU + 2 * k, XU + 2 * k + 1))
        I('buffer_store_dwordx4 %s, v%d, s[96:99], 0 offen offset:%d' % (vr(X1 + 4 * t, 4), DN_OUT, 32 * t))


def gen_big(opts):
    st = Stream(); I = st.I; p = st.p
    p.label('big_kernel')
    I('s_cmp_ge_u32 s2, 256')
    I('s_cbranch_scc1 L_big_end')
    attn_setup(st, opts)
    qproj(st, opts)
    attn_main(st, opts)
    wo_setup(st, opts)
    attn_decide(st, opts)
    wo_phase(st, opts)
    ln2_phase(st, opts)
    glu_phase(st, opts)
    down_phase(st, opts)
    if opts.get('stamps'):
        I('s_waitcnt vmcnt(0)')
        stamp(st, 15, opts)
        I('s_cmp_lg_u32 s%d, %d' % (S_WAVE, opts.get('stampwave', 0)))
        I('s_cbranch_scc1 L_big_end')
        I('s_lshl_b32 s32, s2, 7')
        I('s_add_u32 s32, s32, 0x5000000')
        I('v_mov_b32 v1, s32')
        I('s_getreg_b32 s33, hwreg(HW_REG_XCC_ID)')
        I('s_and_b32 s33, s33, 15')
        I('s_lshl_b32 s59, s59, 8')
        I('s_or_b32 s80, s33, s59')
        for k in range(32):
            I('v_mov_b32 v2, s%d' % (64 + k))
            I('global_store_dword v1, v2, s[%d:%d] offset:%d' % (S_WS, S_WS + 1, 4 * k))
    p.label('L_big_end')
    I('s_endpgm')
    fb = attn_fallback(opts)
    items = p.items
    M = st.marks
    ins = lambda l: [i for i in l if isinstance(i, Inst)]
    errs = check_trace(ins(items), 'big main')
    F = fb.marks
    tr = ins(items[M['epi']:M['decided']]) + ins(fb.p.items[:F['maxloop_end']]) + ins(fb.p.items[F['maxloop']:]) + \
        ins(items[M['first']:M['body2']])
    errs += check_trace(tr, 'big fallback')
    assert opts.get('nocheck') or not errs

    def body_text(j):
        a = M['body%d' % j]
        b = M['body%d' % (j + 1)] if j < 31 else M['epi']
        return [x.text if isinstance(x, Inst) else x for x in items[a:b]]
    LO, NB = 1, 28
    for j in range(LO, LO + NB - 4):
        assert body_text(j) == body_text(j + 4), ('body mismatch', j)
    out = Prog()
    out.items = items[:M['body%d' % LO]]
    out.I('s_mov_b32 s%d, 0' % S_CNT)
    if opts.get('align'):
        out.raw('.p2align %d' % opts['align'])
    out.label('L_attn_loop')
    loop = items[M['body%d' % LO]:M['body%d' % (LO + 4)]]
    out.items += loop[:-6]
    out.I('s_add_u32 s%d, s%d, 1' % (S_CNT, S_CNT))
    out.items += loop[-6:]
    out.I('s_cmp_lt_u32 s%d, %d' % (S_CNT, NB // 4))
    out.I('s_cbranch_scc1 L_attn_loop')
    out.items += items[M['body%d' % (LO + NB)]:]
    out.items += fb.p.items
    return out
```

```python
import struct
from asmlib import Prog, Inst, check_trace

WS_MOD = 0
WS_H = 0x20000
WS_O = 0x400000
WS_X1 = 0x1400000
WS_H2 = 0x1800000
WS_HH = 0x2000000
WS_PART = 0x3000000

WS_FLAGS = 0x8000

MF = 'v_mfma_f32_32x32x16_bf16'


def vr(b, n):
    return 'v[%d:%d]' % (b, b + n - 1)


def ar(b, n):
    return 'a[%d:%d]' % (b, b + n - 1)


def sr(b, n):
    return 's[%d:%d]' % (b, b + n - 1)


def f32bits(x):
    return struct.unpack('<I', struct.pack('<f', x))[0]


class Stream:
    def __init__(self):
        self.p = Prog()
        self.lg = []
        self.lg_done = -1
        self.vm = []
        self.vm_done = -1
        self.marks = {}

    def mark(self, name):
        self.marks[name] = len(self.p.items)

    def I(self, text, tag=None):
        if ' lds' in text:
            prev = self.p.items[-1]
            if isinstance(prev, Inst) and 'm0' in prev.writes:
                self.p.I('s_nop 0')
        self.p.I(text)
        ins = self.p.items[-1]
        if isinstance(ins, Inst):
            if ins.kind in ('dsread', 'dswrite'):
                self.lg.append(tag)
            elif ins.kind in ('vload', 'vstore', 'dma'):
                self.vm.append(tag)

    def _last(self, q, tag):
        for i in range(len(q) - 1, -1, -1):
            if q[i] == tag:
                return i
        raise KeyError(tag)

    def need(self, lg=None, vm=None):
        parts = []
        if vm is not None:
            i = self._last(self.vm, vm)
            if i > self.vm_done:
                n = min(len(self.vm) - 1 - i, 63)
                parts.append('vmcnt(%d)' % n)
                self.vm_done = len(self.vm) - 1 - n
        if lg is not None:
            i = self._last(self.lg, lg)
            if i > self.lg_done:
                n = min(len(self.lg) - 1 - i, 15)
                parts.append('lgkmcnt(%d)' % n)
                self.lg_done = len(self.lg) - 1 - n
        if parts:
            self.p.I('s_waitcnt ' + ' '.join(parts))

    def drain(self, vm=True, lg=True):
        parts = []
        if vm:
            parts.append('vmcnt(0)')
            self.vm_done = len(self.vm) - 1
        if lg:
            parts.append('lgkmcnt(0)')
            self.lg_done = len(self.lg) - 1
        self.p.I('s_waitcnt ' + ' '.join(parts))


class Sched:
    def __init__(self):
        self.fill = {}

    def add(self, g, fn, prio=5):
        self.fill.setdefault(g, []).append((prio, len(self.fill.get(g, [])), fn))

    def pop(self, g):
        l = self.fill.pop(g, [])
        l.sort(key=lambda t: (t[0], t[1]))
        return [t[2] for t in l]

    def flush_upto(self, st, g):
        for k in sorted(k for k in self.fill if k <= g):
            for fn in self.pop(k):
                fn(st)


def srd(I, d, src, size, add=None):
    if add is None:
        if d != src:
            I('s_mov_b32 s%d, s%d' % (d, src))
            I('s_mov_b32 s%d, s%d' % (d + 1, src + 1))
    else:
        I('s_add_u32 s%d, s%d, %s' % (d, src, add))
        I('s_addc_u32 s%d, s%d, 0' % (d + 1, src + 1))
    I('s_mov_b32 s%d, %s' % (d + 2, size))
    I('s_mov_b32 s%d, 0x20000' % (d + 3))


def stamp(st, idx, opts):
    if opts.get('stamps'):
        st.p.I('s_memtime s[60:61]')
        st.p.I('s_memrealtime s[62:63]')
        st.p.I('s_waitcnt lgkmcnt(0)')
        st.p.I('s_mov_b32 s%d, s60' % (80 + idx))
        st.p.I('s_mov_b32 s%d, s62' % (64 + idx))
        st.lg_done = len(st.lg) - 1


def stamps_begin(st, opts):
    if opts.get('stamps'):
        st.I('s_load_dwordx2 s[36:37], s[0:1], 96')
        for k in range(16):
            st.I('s_mov_b32 s%d, 0' % (64 + k))
            st.I('s_mov_b32 s%d, 0' % (80 + k))
        stamp(st, 0, opts)


def stamps_end(st, opts, endlabel, wave_sgpr, idx_a, idx_b):
    if not opts.get('stamps'):
        return
    I = st.I
    stamp(st, idx_a, opts)
    I('s_waitcnt vmcnt(0)')
    stamp(st, idx_b, opts)
    I('s_cmp_lg_u32 s2, %d' % opts.get('stampwg', 0))
    I('s_cbranch_scc1 %s' % endlabel)
    I('s_cmp_lg_u32 s%d, 0' % wave_sgpr)
    I('s_cbranch_scc1 %s' % endlabel)
    I('s_mov_b64 exec, -1')
    I('v_mov_b32 v1, 0')
    for k in range(32):
        I('v_mov_b32 v2, s%d' % (64 + k))
        I('global_store_dword v1, v2, s[36:37] offset:%d' % (4 * k))
```

```python
from common import *

LOG2E = 1.4426950408889634
CS = 128 ** -0.5 * LOG2E
DPP = ' row_mask:0xf bank_mask:0xf'


def finish(st, name):
    errs = check_trace(st.p.insts(), name)
    assert not errs
    return st.p


def unpack(I, dst, src, n):
    for k in range(n):
        I('v_lshlrev_b32 v%d, 16, v%d' % (dst + 2 * k, src + k))
        I('v_and_b32 v%d, 0xffff0000, v%d' % (dst + 2 * k + 1, src + k))


def rows_allreduce(I, regs, tmp):
    for sw in ('v_permlane16_swap_b32', 'v_permlane32_swap_b32'):
        for k, r in enumerate(regs):
            I('v_mov_b32 v%d, v%d' % (tmp + k, r))
        I('s_nop 1')
        for k, r in enumerate(regs):
            I('%s v%d, v%d' % (sw, r, tmp + k))
        for k, r in enumerate(regs):
            I('v_add_f32 v%d, v%d, v%d' % (r, r, tmp + k))


def dpp_add(I, regs, ctrl):
    if len(regs) < 3:
        I('s_nop 1')
    for r in regs:
        I('v_add_f32_dpp v%d, v%d, v%d %s%s' % (r, r, r, ctrl, DPP))


def gen_mod(opts):
    st = Stream(); I = st.I; p = st.p
    p.label('mod_kernel')
    I('s_cmp_ge_u32 s2, 192')
    I('s_cbranch_scc1 L_mod_end')
    I('s_load_dwordx4 s[4:7], s[0:1], 72')
    I('s_load_dwordx2 s[16:17], s[0:1], 104')
    stamps_begin(st, opts)
    I('v_lshrrev_b32 v1, 1, v0')
    I('v_and_b32 v2, 1, v0')
    I('v_mul_u32_u24 v3, 6144, v1')
    I('v_lshl_add_u32 v3, v2, 4, v3')
    I('s_lshl_b32 s3, s2, 5')
    I('v_add_u32 v3, s3, v3')
    I('v_lshlrev_b32 v4, 1, v1')
    I('v_lshrrev_b32 v5, 6, v0')
    I('s_mov_b32 s21, 786432')
    I('v_readfirstlane_b32 s20, v5')
    I('s_mov_b32 s22, 1572864')
    I('s_mov_b32 s23, 2359296')
    I('s_waitcnt lgkmcnt(0)')
    srd(I, 8, 4, 1024)
    srd(I, 12, 6, 3145728)
    srd(I, 28, 16, 17408 + 32768, add=str(WS_FLAGS))
    srd(I, 16, 16, 12288)
    I('s_lshl_b32 s3, s2, 10')
    I('v_lshl_add_u32 v6, v0, 2, s3')
    I('v_mov_b32 v7, 0')
    I('buffer_store_dword v7, v6, s[28:31], 0 offen')
    for j in range(4):
        I('buffer_load_ushort v%d, v4, s[8:11], 0 offen offset:%d' % (8 + j, 256 * j), ('c', j))
    for j in range(4):
        I('buffer_load_dwordx4 %s, v3, s[12:15], %s offen' % (vr(12 + 4 * j, 4), ['0', 's21', 's22', 's23'][j]), ('w', j))
    st.need(vm=('c', 3))
    for j in range(4):
        I('v_lshlrev_b32 v%d, 16, v%d' % (8 + j, 8 + j))
    for j in range(4):
        I('v_mul_f32 v%d, 0x%08x, v%d' % (28 + j, f32bits(-LOG2E), 8 + j))
    for j in range(4):
        I('v_exp_f32 v%d, v%d' % (28 + j, 28 + j))
    for j in range(4):
        I('v_add_f32 v%d, 1.0, v%d' % (28 + j, 28 + j))
    for j in range(4):
        I('v_rcp_f32 v%d, v%d' % (28 + j, 28 + j))
    for j in range(4):
        I('v_mul_f32 v%d, v%d, v%d' % (8 + j, 8 + j, 28 + j))
    I('v_cvt_pk_bf16_f32 v28, v8, v9')
    I('v_cvt_pk_bf16_f32 v29, v10, v11')
    unpack(I, 8, 28, 2)
    for j in range(4):
        st.need(vm=('w', j))
        unpack(I, 40, 12 + 4 * j, 4)
        for k in range(8):
            if j == 0:
                I('v_mul_f32 v%d, v8, v%d' % (32 + k, 40 + k))
            else:
                I('v_fmac_f32 v%d, v%d, v%d' % (32 + k, 8 + j, 40 + k))
    acc = list(range(32, 40))
    dpp_add(I, acc, 'quad_perm:[2,3,0,1]')
    dpp_add(I, acc, 'row_ror:4')
    dpp_add(I, acc, 'row_ror:8')
    I('v_lshrrev_b32 v5, 4, v0')
    I('v_lshlrev_b32 v5, 6, v5')
    I('v_lshl_add_u32 v5, v2, 5, v5')
    I('v_and_b32 v6, 15, v0')
    I('v_cmp_gt_u32 vcc, 2, v6')
    I('s_and_saveexec_b64 s[24:25], vcc')
    I('ds_write_b128 v5, v[32:35]')
    I('ds_write_b128 v5, v[36:39] offset:16')
    I('s_mov_b64 exec, s[24:25]')
    st.drain(vm=False)
    I('s_barrier')
    I('s_cmp_lg_u32 s20, 0')
    I('s_cbranch_scc1 L_mod_end')
    I('v_lshlrev_b32 v5, 2, v6')
    for r in range(0, 16, 2):
        I('ds_read2_b32 %s, v5 offset0:%d offset1:%d' % (vr(12 + r, 2), 16 * r, 16 * r + 16))
    st.drain(vm=False)
    for w in (8, 4, 2, 1):
        for k in range(w):
            I('v_add_f32 v%d, v%d, v%d' % (12 + k, 12 + k, 12 + k + w))
    I('v_cvt_pk_bf16_f32 v12, v12, v12')
    I('s_lshl_b32 s3, s2, 6')
    I('v_lshlrev_b32 v12, 16, v12')
    I('v_add_u32 v5, s3, v5')
    I('v_cmp_gt_u32 vcc, 16, v0')
    I('s_and_saveexec_b64 s[24:25], vcc')
    I('buffer_store_dword v12, v5, s[16:19], 0 offen')
    stamps_end(st, opts, 'L_mod_end', 20, 5, 6)
    p.label('L_mod_end')
    I('s_endpgm')
    return finish(st, 'mod')


def wave_allreduce(I, regs, tmp):
    dpp_add(I, regs, 'quad_perm:[1,0,3,2]')
    dpp_add(I, regs, 'quad_perm:[2,3,0,1]')
    dpp_add(I, regs, 'row_ror:4')
    dpp_add(I, regs, 'row_ror:8')
    rows_allreduce(I, regs, tmp)


def gen_h(opts):
    st = Stream(); I = st.I; p = st.p
    p.label('h_kernel')
    I('s_cmp_ge_u32 s2, 256')
    I('s_cbranch_scc1 L_h_end')
    I('s_load_dwordx2 s[4:5], s[0:1], 0')
    I('s_load_dwordx2 s[8:9], s[0:1], 104')
    stamps_begin(st, opts)
    I('v_and_b32 v1, 63, v0')
    I('v_lshrrev_b32 v2, 6, v0')
    I('v_lshrrev_b32 v3, 1, v1')
    I('v_readfirstlane_b32 s20, v2')
    I('v_and_b32 v4, 1, v1')
    I('s_lshl_b32 s3, s2, 3')
    I('v_lshl_add_u32 v5, v2, 1, s3')
    I('v_lshlrev_b32 v6, 5, v3')
    I('v_lshl_add_u32 v6, v4, 3, v6')
    I('v_lshl_add_u32 v7, v5, 10, v6')
    I('v_lshlrev_b32 v8, 1, v6')
    I('v_lshrrev_b32 v9, 5, v5')
    I('v_lshl_add_u32 v9, v9, 5, v3')
    I('v_lshlrev_b32 v9, 10, v9')
    I('v_and_b32 v10, 31, v5')
    I('v_lshl_add_u32 v10, v4, 5, v10')
    I('v_lshl_add_u32 v9, v10, 4, v9')
    I('s_waitcnt lgkmcnt(0)')
    srd(I, 4, 4, 2097152)
    srd(I, 12, 8, 2097152, add=str(WS_H))
    srd(I, 8, 8, 12288)
    for r in range(2):
        I('buffer_load_dwordx2 %s, v7, s[4:7], 0 offen offset:%d' % (vr(12 + 4 * r, 2), 1024 * r), ('x', r))
        I('buffer_load_dwordx2 %s, v7, s[4:7], 0 offen offset:%d' % (vr(14 + 4 * r, 2), 1024 * r + 16), ('x', r))
    for m in range(2):
        I('buffer_load_dwordx4 %s, v8, s[8:11], 0 offen offset:%d' % (vr(20 + 8 * m, 4), 2048 * m), 'm')
        I('buffer_load_dwordx4 %s, v8, s[8:11], 0 offen offset:%d' % (vr(24 + 8 * m, 4), 2048 * m + 32), 'm')
    st.need(vm=('x', 1))
    unpack(I, 40, 12, 4)
    unpack(I, 48, 16, 4)
    for r in range(2):
        b = 40 + 8 * r
        I('v_add_f32 v%d, v%d, v%d' % (56 + r, b, b + 1))
        for k in range(2, 8):
            I('v_add_f32 v%d, v%d, v%d' % (56 + r, 56 + r, b + k))
    wave_allreduce(I, [56, 57], 60)
    for r in range(2):
        I('v_mul_f32 v%d, 0x%08x, v%d' % (56 + r, f32bits(1.0 / 512), 56 + r))
    for r in range(2):
        for k in range(8):
            I('v_sub_f32 v%d, v%d, v%d' % (40 + 8 * r + k, 40 + 8 * r + k, 56 + r))
    for r in range(2):
        b = 40 + 8 * r
        I('v_mul_f32 v%d, v%d, v%d' % (58 + r, b, b))
        for k in range(1, 8):
            I('v_fmac_f32 v%d, v%d, v%d' % (58 + r, b + k, b + k))
    wave_allreduce(I, [58, 59], 60)
    I('v_mov_b32 v60, 0x%08x' % f32bits(1e-5))
    for r in range(2):
        I('v_mul_f32 v%d, 0x%08x, v%d' % (58 + r, f32bits(1.0 / 512), 58 + r))
    for r in range(2):
        I('v_add_f32 v%d, v60, v%d' % (58 + r, 58 + r))
    for r in range(2):
        I('v_rsq_f32 v%d, v%d' % (58 + r, 58 + r))
    st.need(vm='m')
    for k in range(8):
        I('v_add_f32 v%d, 1.0, v%d' % (28 + k, 28 + k))
    for k in range(4):
        I('v_cvt_pk_bf16_f32 v%d, v%d, v%d' % (12 + k, 28 + 2 * k, 29 + 2 * k))
    unpack(I, 28, 12, 4)
    for k in range(16):
        I('v_mul_f32 v%d, 0x%08x, v%d' % (20 + k, f32bits(CS), 20 + k))
    for r in range(2):
        b = 40 + 8 * r
        for k in range(8):
            I('v_mul_f32 v%d, v%d, v%d' % (b + k, b + k, 58 + r))
        for k in range(8):
            I('v_fma_f32 v%d, v%d, v%d, v%d' % (b + k, b + k, 28 + k, 20 + k))
        for k in range(4):
            I('v_cvt_pk_bf16_f32 v%d, v%d, v%d' % (12 + 4 * r + k, b + 2 * k, b + 2 * k + 1))
        I('buffer_store_dwordx4 %s, v9, s[12:15], 0 offen offset:%d' % (vr(12 + 4 * r, 4), 16 * r))
    stamps_end(st, opts, 'L_h_end', 20, 5, 6)
    p.label('L_h_end')
    I('s_endpgm')
    return finish(st, 'h')


def tr_lane_terms(I, lane, hf, rr, low):
    I('v_lshrrev_b32 v%d, 5, v%d' % (hf, lane))
    I('v_bfe_u32 v%d, v%d, 2, 2' % (rr, lane))
    I('v_and_b32 v%d, 1, v%d' % (low, lane))
    I('v_lshlrev_b32 v%d, 4, v%d' % (low, low))
    I('v_bfe_u32 v%d, v%d, 1, 1' % (low + 1, lane))
    I('v_lshl_add_u32 v%d, v%d, 3, v%d' % (low, low + 1, low))
    I('v_bfe_u32 v%d, v%d, 4, 1' % (low + 1, lane))


def gen_wo(opts):
    st = Stream(); I = st.I; p = st.p
    LEAD = opts.get('wo_lead', 2)
    p.label('wo_kernel')
    I('s_cmp_ge_u32 s2, 256')
    I('s_cbranch_scc1 L_wo_end')
    I('s_load_dwordx2 s[4:5], s[0:1], 32')
    I('s_load_dwordx2 s[8:9], s[0:1], 104')
    stamps_begin(st, opts)
    I('s_bfe_u32 s24, s2, 0x20001')
    I('s_and_b32 s25, s2, 1')
    I('s_lshl_b32 s25, s25, 3')
    I('s_bfe_u32 s26, s2, 0x30003')
    I('s_add_u32 s25, s25, s26')
    I('s_lshr_b32 s26, s2, 6')
    I('v_and_b32 v1, 63, v0')
    I('v_lshrrev_b32 v2, 6, v0')
    tr_lane_terms(I, 1, 3, 4, 5)
    I('v_readfirstlane_b32 s20, v2')
    I('v_lshl_add_u32 v7, v3, 3, v4')
    I('v_lshlrev_b32 v7, 8, v7')
    I('v_and_b32 v8, 1, v2')
    I('v_lshlrev_b32 v8, 1, v8')
    I('v_xor_b32 v8, v8, v4')
    I('v_lshl_add_u32 v7, v8, 6, v7')
    I('v_lshl_add_u32 v7, v6, 5, v7')
    I('v_add_u32 v10, v7, v5')
    I('v_xor_b32 v11, 64, v10')
    I('v_lshrrev_b32 v7, 1, v2')
    I('v_lshlrev_b32 v7, 13, v7')
    I('v_lshl_add_u32 v7, v1, 4, v7')
    I('v_add_u32 v12, 0x10000, v7')
    I('v_lshrrev_b32 v7, 4, v1')
    I('v_and_b32 v8, 15, v1')
    I('v_lshlrev_b32 v9, 2, v7')
    I('v_xor_b32 v8, v8, v9')
    I('v_lshl_add_u32 v7, v2, 4, v7')
    I('v_lshlrev_b32 v7, 10, v7')
    I('v_lshl_add_u32 v13, v8, 4, v7')
    for i in range(1, 4):
        I('v_add_u32 v%d, %d, v13' % (13 + i, i * 3072))
    I('v_lshlrev_b32 v7, 18, v2')
    I('v_lshl_add_u32 v17, v1, 4, v7')
    I('v_lshrrev_b32 v7, 1, v2')
    I('v_lshlrev_b32 v7, 17, v7')
    I('v_and_b32 v8, 1, v2')
    I('v_lshl_add_u32 v7, v8, 13, v7')
    I('v_lshl_add_u32 v18, v1, 4, v7')
    I('s_lshl_b32 s21, s20, 12')
    I('s_waitcnt lgkmcnt(0)')
    I('s_lshl_b32 s27, s24, 20')
    I('s_lshl_b32 s28, s26, 8')
    I('s_add_u32 s27, s27, s28')
    I('s_sub_u32 s28, 4194304, s27')
    srd(I, 4, 4, 's28', add='s27')
    I('s_lshl_b32 s27, s25, 20')
    I('s_lshl_b32 s28, s24, 16')
    I('s_add_u32 s27, s27, s28')
    I('s_add_u32 s27, s27, %d' % WS_O)
    srd(I, 12, 8, 4 * 262144, add='s27')
    I('s_lshl_b32 s27, s24, 22')
    I('s_lshl_b32 s28, s25, 18')
    I('s_add_u32 s27, s27, s28')
    I('s_lshl_b32 s28, s26, 14')
    I('s_add_u32 s27, s27, s28')
    I('s_add_u32 s27, s27, %d' % WS_PART)
    srd(I, 16, 8, 4 * 65536, add='s27')
    I('s_mov_b32 s22, 0')
    I('s_mov_b32 s23, 0')
    NC = 16

    def dma(c):
        l = []
        for i in range(4):
            def fa(st, i=i):
                if i == 0:
                    st.I('s_add_u32 m0, s21, %d' % ((c % 4) * 16384))
                    st.I('s_nop 0')
                st.I('buffer_load_dwordx4 v%d, s[4:7], s22 offen offset:%d lds' % (13 + i, i * 1024), ('C', c))
                if i == 3:
                    st.I('s_add_u32 s22, s22, 65536')
            l.append(fa)
        for i in range(4):
            def fb(st, i=i):
                if i == 0:
                    st.I('s_add_u32 m0, s21, %d' % (65536 + (c % 4) * 16384))
                    st.I('s_nop 0')
                st.I('buffer_load_dwordx4 v17, s[12:15], s23 offen offset:%d lds' % (i * 1024), ('C', c))
                if i == 3:
                    st.I('s_add_u32 s23, s23, 4096')
            l.append(fb)
        return l
    stamp(st, 7, opts)
    for c in range(3):
        for f in dma(c):
            f(st)
    stamp(st, 8, opts)
    ACC = 64
    NS = 4
    FR = 128
    sc = Sched()
    for K in range(NC * 4):
        c, ks = K // 4, K % 4
        b = FR + 16 * (K % NS)
        g0 = 4 * (K - LEAD)
        rd = []
        for ni in range(2):
            for n in range(2):
                rd.append('ds_read_b64_tr_b16 %s, v%d offset:%d' % (vr(b + 4 * ni + 2 * n, 2), 10 + ni,
                                                                   (c % 4) * 16384 + ks * 4096 + n * 1024))
        for mi in range(2):
            rd.append('ds_read_b128 %s, v12 offset:%d' % (vr(b + 8 + 4 * mi, 4), (c % 4) * 16384 + mi * 4096 + ks * 1024))
        order = [rd[0], rd[1], rd[4], rd[5], rd[2], rd[3]]
        for k, t in enumerate(order):
            sc.add(g0 + [0, 0, 1, 2, 3, 3][k], (lambda s_, t=t, K=K: s_.I(t, ('F', K))), prio=6)
        if ks == 0:
            def bar(st, c=c):
                if c > 0:
                    st.need(lg=('F', 4 * c - 1))
                st.need(vm=('C', c))
                st.I('s_barrier')
            sc.add(g0, bar, prio=0)
            if c + 3 < NC:
                for k, f in enumerate(dma(c + 3)):
                    sc.add(g0 + 2 * k + 1, f, prio=7)
    sc.flush_upto(st, -1)
    stamp(st, 1, opts)
    for K in range(NC * 4):
        b = FR + 16 * (K % NS)
        st.need(lg=('F', K))
        for k, (mi, ni) in enumerate(((0, 0), (1, 0), (1, 1), (0, 1))):
            acc = ACC + 32 * mi + 16 * ni
            I('%s %s, %s, %s, %s' % (MF, vr(acc, 16), vr(b + 4 * ni, 4), vr(b + 8 + 4 * mi, 4), '0' if K == 0 else vr(acc, 16)))
            for fn in sc.pop(4 * K + k):
                fn(st)
    assert not sc.fill
    stamp(st, 2, opts)
    I('s_mov_b32 s22, 65536')
    I('v_add_u32 v19, 4096, v18')
    I('s_nop 7')
    I('s_nop 1')
    for (mi, ni) in ((0, 0), (1, 0), (1, 1), (0, 1)):
        for t in range(2):
            for q4 in range(2):
                off = ((2 * ni + t) * 2 + q4) * 1024
                I('buffer_store_dwordx4 %s, v%d, s[16:19], %s offen offset:%d' % (
                    vr(ACC + 32 * mi + 16 * ni + 8 * t + 4 * q4, 4), 18 if off < 4096 else 19, 's22' if mi else '0', off % 4096))
    stamps_end(st, opts, 'L_wo_end', 20, 5, 6)
    p.label('L_wo_end')
    I('s_endpgm')
    return finish(st, 'wo')


def gen_ln2(opts):
    st = Stream(); I = st.I; p = st.p
    p.label('ln2_kernel')
    I('s_cmp_ge_u32 s2, 256')
    I('s_cbranch_scc1 L_ln2_end')
    I('s_load_dwordx2 s[4:5], s[0:1], 0')
    I('s_load_dwordx2 s[8:9], s[0:1], 104')
    stamps_begin(st, opts)
    I('v_and_b32 v1, 63, v0')
    I('v_lshrrev_b32 v2, 6, v0')
    I('v_and_b32 v3, 7, v1')
    I('v_readfirstlane_b32 s20, v2')
    I('v_bfe_u32 v4, v1, 3, 1')
    I('v_lshrrev_b32 v5, 4, v1')
    I('v_lshl_add_u32 v5, v2, 3, v5')
    I('s_and_b32 s3, s2, 3')
    I('s_lshl_b32 s3, s3, 3')
    I('v_add_u32 v6, s3, v3')
    I('v_lshl_add_u32 v6, v4, 5, v6')
    I('v_lshlrev_b32 v6, 4, v6')
    I('v_lshl_add_u32 v7, v5, 11, v6')
    I('v_lshl_add_u32 v8, v5, 10, v6')
    I('v_lshlrev_b32 v9, 5, v5')
    I('v_lshl_add_u32 v9, v4, 4, v9')
    I('v_lshlrev_b32 v10, 1, v9')
    I('s_lshl_b32 s3, s2, 3')
    I('v_add_u32 v11, s3, v3')
    I('v_lshl_add_u32 v9, v11, 10, v9')
    I('s_lshr_b32 s21, s2, 2')
    I('s_waitcnt lgkmcnt(0)')
    srd(I, 4, 4, 2097152)
    I('s_lshl_b32 s22, s21, 16')
    I('s_add_u32 s22, s22, %d' % WS_PART)
    srd(I, 12, 8, 3 * 4194304 + 65536, add='s22')
    I('s_lshl_b32 s22, s21, 15')
    I('s_add_u32 s23, s22, %d' % WS_X1)
    srd(I, 16, 8, 32768, add='s23')
    I('s_add_u32 s23, s22, %d' % WS_H2)
    srd(I, 24, 8, 32768, add='s23')
    srd(I, 8, 8, 12288)
    I('s_mov_b32 s28, 4194304')
    I('s_mov_b32 s29, 8388608')
    I('s_mov_b32 s30, 12582912')
    I('v_add_u32 v12, 8192, v7')
    I('s_mov_b32 s31, 8192')
    PB = 64
    for i in range(2):
        for ks in range(4):
            for q4 in range(2):
                I('buffer_load_dwordx4 %s, v%d, s[12:15], %s offen offset:%d' % (
                    vr(PB + 32 * i + 8 * ks + 4 * q4, 4), 12 if i else 7, ['0', 's28', 's29', 's30'][ks], q4 * 1024), ('p', i))
    for i in range(2):
        I('buffer_load_dwordx4 %s, v9, s[4:7], 0 offen offset:%d' % (vr(16 + 4 * i, 4), 128 * i), 'x')
    I('v_add_u32 v13, 4096, v10')
    for i in range(2):
        for q in range(2):
            I('buffer_load_dwordx4 %s, v13, s[8:11], 0 offen offset:%d' % (vr(128 + 8 * i + 4 * q, 4), 256 * i + 16 * q), 'ga')
    for i in range(2):
        for q in range(2):
            I('buffer_load_dwordx4 %s, v13, s[8:11], 0 offen offset:%d' % (vr(144 + 8 * i + 4 * q, 4), 2048 + 256 * i + 16 * q), 'sb')
    for i in range(2):
        for q in range(2):
            I('buffer_load_dwordx4 %s, v10, s[8:11], s31 offen offset:%d' % (vr(160 + 8 * i + 4 * q, 4), 256 * i + 16 * q), 'cb')
    for i in range(2):
        st.need(vm=('p', i))
        b = PB + 32 * i
        for k in range(0, 8, 2):
            I('v_pk_add_f32 %s, %s, %s' % (vr(b + k, 2), vr(b + k, 2), vr(b + 8 + k, 2)))
            I('v_pk_add_f32 %s, %s, %s' % (vr(b + 16 + k, 2), vr(b + 16 + k, 2), vr(b + 24 + k, 2)))
        for k in range(0, 8, 2):
            I('v_pk_add_f32 %s, %s, %s' % (vr(b + k, 2), vr(b + k, 2), vr(b + 16 + k, 2)))
    st.need(vm='ga')
    unpack(I, 24, 16, 8)
    for i in range(2):
        for k in range(8):
            I('v_fmac_f32 v%d, v%d, v%d' % (24 + 8 * i + k, 128 + 8 * i + k, PB + 32 * i + k))
    for k in range(8):
        I('v_cvt_pk_bf16_f32 v%d, v%d, v%d' % (16 + k, 24 + 2 * k, 25 + 2 * k))
    I('v_add_u32 v14, 4096, v8')
    I('buffer_store_dwordx4 v[16:19], v8, s[16:19], 0 offen')
    I('buffer_store_dwordx4 v[20:23], v14, s[16:19], 0 offen')
    unpack(I, 24, 16, 8)
    I('v_add_f32 v40, v24, v25')
    I('v_mul_f32 v41, v24, v24')
    I('v_fmac_f32 v41, v25, v25')
    for k in range(2, 16):
        I('v_add_f32 v40, v40, v%d' % (24 + k))
        I('v_fmac_f32 v41, v%d, v%d' % (24 + k, 24 + k))
    dpp_add(I, [40, 41], 'row_ror:8')
    rows_allreduce(I, [40, 41], 42)
    I('v_lshlrev_b32 v44, 3, v3')
    I('v_lshl_add_u32 v45, v2, 6, v44')
    I('ds_write_b64 v45, v[40:41]')
    st.drain(vm=False)
    I('s_barrier')
    for w in range(4):
        I('ds_read_b64 %s, v44 offset:%d' % (vr(46 + 2 * w, 2), 64 * w))
    st.need(vm='cb')
    for k in range(16):
        I('v_add_f32 v%d, 1.0, v%d' % (160 + k, 160 + k))
    for k in range(8):
        I('v_cvt_pk_bf16_f32 v%d, v%d, v%d' % (56 + k, 160 + 2 * k, 161 + 2 * k))
    unpack(I, 160, 56, 8)
    st.drain(vm=False)
    I('v_pk_add_f32 v[46:47], v[46:47], v[48:49]')
    I('v_pk_add_f32 v[50:51], v[50:51], v[52:53]')
    I('v_pk_add_f32 v[46:47], v[46:47], v[50:51]')
    I('v_mul_f32 v46, 0x%08x, v46' % f32bits(1.0 / 512))
    I('v_mul_f32 v47, 0x%08x, v47' % f32bits(1.0 / 512))
    I('v_fma_f32 v47, -v46, v46, v47')
    I('v_max_f32 v47, 0, v47')
    I('v_add_f32 v47, 0x%08x, v47' % f32bits(1e-5))
    I('v_rsq_f32 v47, v47')
    for k in range(16):
        I('v_sub_f32 v%d, v%d, v46' % (24 + k, 24 + k))
    for k in range(16):
        I('v_mul_f32 v%d, v%d, v47' % (24 + k, 24 + k))
    for k in range(16):
        I('v_fma_f32 v%d, v%d, v%d, v%d' % (24 + k, 24 + k, 160 + k, 144 + k))
    for k in range(8):
        I('v_cvt_pk_bf16_f32 v%d, v%d, v%d' % (56 + k, 24 + 2 * k, 25 + 2 * k))
    I('buffer_store_dwordx4 v[56:59], v8, s[24:27], 0 offen')
    I('buffer_store_dwordx4 v[60:63], v14, s[24:27], 0 offen')
    stamps_end(st, opts, 'L_ln2_end', 20, 5, 6)
    p.label('L_ln2_end')
    I('s_endpgm')
    return finish(st, 'ln2')


GLU_SLOT = 28928
GLU_U = 14464


def gen_glu(opts):
    st = Stream(); I = st.I; p = st.p
    LEAD = opts.get('glu_lead', 6)
    p.label('glu_kernel')
    I('s_cmp_ge_u32 s2, 256')
    I('s_cbranch_scc1 L_glu_end')
    I('s_load_dwordx4 s[4:7], s[0:1], 48')
    I('s_load_dwordx2 s[8:9], s[0:1], 104')
    stamps_begin(st, opts)
    I('s_and_b32 s25, s2, 1')
    I('s_lshl_b32 s25, s25, 3')
    I('s_bfe_u32 s26, s2, 0x30003')
    I('s_add_u32 s25, s25, s26')
    I('s_and_b32 s26, s2, 6')
    I('s_lshl_b32 s26, s26, 1')
    I('s_lshr_b32 s27, s2, 6')
    I('s_add_u32 s26, s26, s27')
    I('v_and_b32 v1, 63, v0')
    I('v_lshrrev_b32 v2, 6, v0')
    tr_lane_terms(I, 1, 3, 4, 5)
    I('v_readfirstlane_b32 s20, v2')
    I('v_lshl_add_u32 v7, v3, 3, v4')
    I('v_mul_u32_u24 v7, 224, v7')
    I('v_mul_u32_u24 v8, %d, v6' % GLU_U)
    I('v_add3_u32 v10, v7, v8, v5')
    I('v_add_u32 v11, %d, v10' % (2 * GLU_SLOT))
    I('v_and_b32 v8, 1, v2')
    I('v_lshlrev_b32 v8, 5, v8')
    for i in range(7):
        I('v_add_u32 v7, %d, v1' % (64 * i))
        I('v_mul_u32_u24 v9, 4682, v7')
        I('v_lshrrev_b32 v9, 16, v9')
        I('v_mul_u32_u24 v20, 14, v9')
        I('v_sub_u32 v7, v7, v20')
        I('v_add_u32 v9, v9, v8')
        I('v_mul_u32_u24 v9, 3584, v9')
        I('v_lshl_add_u32 v9, v7, 4, v9')
        I('v_subrev_u32 v%d, %d, v9' % (12 + i, (i % 4) * 1024))
    I('v_lshlrev_b32 v7, 15, v2')
    I('v_lshl_add_u32 v19, v1, 4, v7')
    I('v_mul_u32_u24 v7, %d, v2' % (112))
    I('v_lshlrev_b32 v7, 10, v7')
    I('v_lshl_add_u32 v20, v1, 4, v7')
    I('s_lshr_b32 s21, s20, 1')
    I('s_mul_i32 s21, s21, %d' % GLU_U)
    I('s_and_b32 s22, s20, 1')
    I('s_mul_i32 s22, s22, 7168')
    I('s_add_u32 s21, s21, s22')
    I('s_waitcnt lgkmcnt(0)')
    I('s_cmp_lt_u32 s20, 2')
    I('s_cselect_b32 s4, s4, s6')
    I('s_cselect_b32 s5, s5, s7')
    I('s_mul_i32 s27, s26, 224')
    I('s_sub_u32 s28, 1835008, s27')
    srd(I, 4, 4, 's28', add='s27')
    I('s_lshl_b32 s27, s25, 17')
    I('s_add_u32 s27, s27, %d' % WS_H2)
    srd(I, 12, 8, 131072, add='s27')
    I('s_mul_i32 s27, s25, %d' % (4 * 112 * 1024))
    I('s_mul_i32 s28, s26, 7168')
    I('s_add_u32 s27, s27, s28')
    I('s_add_u32 s27, s27, %d' % WS_HH)
    srd(I, 16, 8, 4 * 112 * 1024, add='s27')
    I('s_mov_b32 s22, 0')
    I('s_mov_b32 s23, 0')

    def dma(c):
        l = []
        for i in range(7):
            def fa(st, i=i):
                if i in (0, 4):
                    st.I('s_add_u32 m0, s21, %d' % ((c % 4) * GLU_SLOT + (4096 if i else 0)))
                    st.I('s_nop 0')
                st.I('buffer_load_dwordx4 v%d, s[4:7], s22 offen offset:%d lds' % (12 + i, (i % 4) * 1024), ('C', c))
                if i == 6:
                    st.I('s_add_u32 s22, s22, %d' % (64 * 3584))
            l.append(fa)
        for ks in range(4):
            def fb(st, ks=ks):
                st.I('buffer_load_dwordx4 %s, v19, s[12:15], s23 offen offset:%d' % (ar(16 * c + 4 * ks, 4), ks * 1024),
                     ('B', 4 * c + ks))
                if ks == 3:
                    st.I('s_add_u32 s23, s23, 4096')
            l.append(fb)
        return l
    stamp(st, 7, opts)
    for c in range(3):
        for f in dma(c):
            f(st)
    stamp(st, 8, opts)
    ACC = 32
    FR = 144
    NR = 14
    sc = Sched()
    NF = 8 * 28
    for F in range(NF):
        c, ks, t = F // 28, (F % 28) // 7, F % 7
        b = FR + 4 * (F % NR)
        for n in range(2):
            off = (c % 2) * GLU_SLOT + ks * 16 * 224 + n * 4 * 224 + t * 32
            sc.add(F - LEAD, (lambda s_, b=b, n=n, off=off, c=c, F=F: s_.I(
                'ds_read_b64_tr_b16 %s, v%d offset:%d' % (vr(b + 2 * n, 2), 10 + (c % 4) // 2, off), ('F', F))), prio=6)
        if F % 28 == 0:
            def bar(st, c=c, F=F):
                if c > 0:
                    st.need(lg=('F', F - 1))
                st.need(vm=('C', c))
                st.I('s_barrier')
            sc.add(F - LEAD, bar, prio=0)
            if c + 3 < 8:
                for k, f in enumerate(dma(c + 3)):
                    sc.add(F - LEAD + 2 * k + 1, f, prio=7)
    sc.flush_upto(st, -1)
    stamp(st, 1, opts)
    for F in range(NF):
        c, ks, t = F // 28, (F % 28) // 7, F % 7
        if F % 2 == 0:
            st.need(lg=('F', min(F + 1, NF - 1)))
        st.need(lg=('F', F), vm=('B', 4 * c + ks))
        acc = ACC + 16 * t
        I('%s %s, %s, %s, %s' % (MF, vr(acc, 16), vr(FR + 4 * (F % NR), 4), ar(16 * c + 4 * ks, 4),
                                '0' if F < 7 else vr(acc, 16)))
        for fn in sc.pop(F):
            fn(st)
    assert not sc.fill
    stamp(st, 2, opts)
    I('v_add_u32 v21, 4096, v20')
    I('s_nop 4')
    for t in range(7):
        acc = ACC + 16 * t
        if t == 6:
            I('s_nop 1')
        for k in range(0, 8, 2):
            I('v_pk_mul_f32 %s, %s, %s' % (vr(acc + k, 2), vr(acc + k, 2), vr(acc + 8 + k, 2)))
        for k in range(4):
            I('v_cvt_pk_bf16_f32 v%d, v%d, v%d' % (acc + 8 + k, acc + 2 * k, acc + 2 * k + 1))
        I('buffer_store_dwordx4 %s, v%d, s[16:19], 0 offen offset:%d' % (vr(acc + 8, 4), 20 if t < 4 else 21, (t % 4) * 1024))
    stamps_end(st, opts, 'L_glu_end', 20, 5, 6)
    p.label('L_glu_end')
    I('s_endpgm')
    return finish(st, 'glu')


def gen_down(opts):
    st = Stream(); I = st.I; p = st.p
    LEAD = opts.get('down_lead', 2)
    p.label('down_kernel')
    I('s_cmp_ge_u32 s2, 256')
    I('s_cbranch_scc1 L_down_end')
    I('s_load_dwordx2 s[4:5], s[0:1], 64')
    I('s_load_dwordx2 s[8:9], s[0:1], 104')
    I('s_load_dwordx2 s[24:25], s[0:1], 88')
    stamps_begin(st, opts)
    I('s_and_b32 s28, s2, 6')
    I('s_lshl_b32 s28, s28, 2')
    I('s_bfe_u32 s29, s2, 0x30003')
    I('s_add_u32 s28, s28, s29')
    I('s_and_b32 s29, s2, 1')
    I('s_lshl_b32 s29, s29, 2')
    I('s_lshr_b32 s30, s2, 6')
    I('s_add_u32 s29, s29, s30')
    I('v_and_b32 v1, 63, v0')
    I('v_lshrrev_b32 v2, 6, v0')
    tr_lane_terms(I, 1, 3, 4, 5)
    I('v_readfirstlane_b32 s20, v2')
    I('v_lshl_add_u32 v7, v3, 3, v4')
    I('v_lshlrev_b32 v7, 7, v7')
    I('v_lshrrev_b32 v8, 1, v4')
    I('v_lshl_add_u32 v7, v8, 6, v7')
    I('v_lshl_add_u32 v7, v6, 5, v7')
    I('v_lshl_add_u32 v7, v2, 15, v7')
    I('v_add_u32 v10, v7, v5')
    I('v_xor_b32 v11, 64, v10')
    I('v_lshrrev_b32 v7, 3, v1')
    I('v_and_b32 v8, 7, v1')
    I('v_bfe_u32 v9, v1, 4, 1')
    I('v_lshlrev_b32 v9, 2, v9')
    I('v_xor_b32 v8, v8, v9')
    I('v_mul_u32_u24 v9, 448, v2')
    I('v_add_u32 v7, v7, v9')
    I('v_lshlrev_b32 v7, 10, v7')
    I('v_lshl_add_u32 v12, v8, 4, v7')
    for i in range(1, 4):
        I('v_add_u32 v%d, %d, v12' % (12 + i, i * 7168))
    I('v_mul_u32_u24 v7, 28672, v2')
    I('v_lshl_add_u32 v16, v1, 4, v7')
    I('v_lshrrev_b32 v7, 1, v2')
    I('v_and_b32 v8, 1, v2')
    I('v_lshlrev_b32 v9, 15, v7')
    I('v_lshl_add_u32 v9, v8, 11, v9')
    I('v_lshl_add_u32 v17, v1, 4, v9')
    I('v_lshlrev_b32 v9, 7, v8')
    I('v_lshl_add_u32 v18, v3, 5, v9')
    I('v_and_b32 v9, 31, v1')
    I('v_lshl_add_u32 v9, v7, 5, v9')
    I('v_lshlrev_b32 v9, 10, v9')
    I('v_lshrrev_b32 v19, 1, v18')
    I('v_add_u32 v19, v19, v9')
    I('s_lshl_b32 s21, s20, 15')
    I('s_waitcnt lgkmcnt(0)')
    I('s_lshl_b32 s30, s29, 7')
    I('s_sub_u32 s31, 1835008, s30')
    srd(I, 4, 4, 's31', add='s30')
    I('s_mul_i32 s30, s28, %d' % (2 * 112 * 1024))
    I('s_add_u32 s30, s30, %d' % WS_HH)
    srd(I, 12, 8, 2 * 112 * 1024, add='s30')
    I('s_lshl_b32 s30, s28, 16')
    I('s_lshl_b32 s31, s29, 12')
    I('s_add_u32 s30, s30, s31')
    I('s_add_u32 s30, s30, %d' % WS_X1)
    srd(I, 16, 8, 65536, add='s30')
    I('s_lshl_b32 s30, s28, 16')
    I('s_lshl_b32 s31, s29, 7')
    I('s_add_u32 s30, s30, s31')
    I('s_sub_u32 s31, 2097152, s30')
    srd(I, 24, 24, 's31', add='s30')
    I('s_lshl_b32 s30, s29, 8')
    I('s_add_u32 s30, s30, %d' % (5 * 2048))
    srd(I, 8, 8, 256, add='s30')
    I('s_mov_b32 s22, 0')
    I('s_mov_b32 s23, 32768')
    I('s_mov_b32 s28, 0')
    I('s_mov_b32 s29, %d' % (112 * 1024))
    NC = 7
    BR = 0

    def dma(c):
        l = []
        for i in range(8):
            def fa(st, i=i):
                if i in (0, 4):
                    st.I('s_add_u32 m0, s21, %d' % ((c % 4) * 8192 + (4096 if i else 0)))
                    st.I('s_nop 0')
                st.I('buffer_load_dwordx4 v%d, s[4:7], s%d offen offset:%d lds' % (12 + i % 4, 22 if i < 4 else 23, (i % 4) * 1024),
                     ('C', c))
                if i == 7:
                    st.I('s_add_u32 s22, s22, 65536')
                    st.I('s_add_u32 s23, s23, 65536')
            l.append(fa)
        lb = []
        for ks in range(4):
            for mi in range(2):
                def fb(st, ks=ks, mi=mi):
                    st.I('buffer_load_dwordx4 %s, v16, s[12:15], s%d offen offset:%d' % (
                        ar(BR + 32 * (c % 4) + 8 * ks + 4 * mi, 4), 29 if mi else 28, ks * 1024), ('B', 4 * c + ks))
                    if ks == 3 and mi == 1:
                        st.I('s_add_u32 s28, s28, 4096')
                        st.I('s_add_u32 s29, s29, 4096')
                lb.append(fb)
        return l + lb
    stamp(st, 7, opts)
    for c in range(3):
        for f in dma(c):
            f(st)
    stamp(st, 8, opts)
    ACC = 64
    FR = 128
    NS = 4
    sc = Sched()
    for K in range(NC * 4):
        c, ks = K // 4, K % 4
        b = FR + 8 * (K % NS)
        g0 = 4 * (K - LEAD)
        if ks == 0:
            sc.add(g0, (lambda s_, c=c: s_.need(vm=('C', c))), prio=0)
        for ni in range(2):
            for n in range(2):
                t = 'ds_read_b64_tr_b16 %s, v%d offset:%d' % (vr(b + 4 * ni + 2 * n, 2), 10 + ni,
                                                              (c % 4) * 8192 + ks * 2048 + n * 512)
                sc.add(g0 + 2 * ni + n, (lambda s_, t=t, K=K: s_.I(t, ('F', K))), prio=6)
        if ks == 0 and c + 3 < NC:
            for k, f in enumerate(dma(c + 3)):
                sc.add(4 * K + k, f, prio=7)
    sc.add(4 * 24, lambda s_: [s_.I('buffer_load_dwordx4 %s, v17, s[16:19], 0 offen offset:%d' % (vr(20 + 4 * t, 4), 1024 * t), 'x1')
                              for t in range(2)], prio=8)
    sc.add(4 * 24 + 1, lambda s_: [s_.I('buffer_load_dwordx4 %s, v18, s[8:11], 0 offen offset:%d' % (vr(28 + 4 * q, 4), 64 * (q // 2) + 16 * (q % 2)), 'gb')
                                  for q in range(4)], prio=8)
    sc.flush_upto(st, -1)
    stamp(st, 1, opts)
    for K in range(NC * 4):
        c, ks = K // 4, K % 4
        b = FR + 8 * (K % NS)
        st.need(lg=('F', K), vm=('B', K))
        for k, (mi, ni) in enumerate(((0, 0), (1, 0), (1, 1), (0, 1))):
            acc = ACC + 32 * mi + 16 * ni
            I('%s %s, %s, %s, %s' % (MF, vr(acc, 16), vr(b + 4 * ni, 4), ar(BR + 32 * (c % 4) + 8 * ks + 4 * mi, 4),
                                    '0' if K == 0 else vr(acc, 16)))
            for fn in sc.pop(4 * K + k):
                fn(st)
    assert not sc.fill
    stamp(st, 2, opts)
    I('v_lshlrev_b32 v7, 4, v1')
    I('v_lshl_add_u32 v8, v2, 15, v7')
    I('v_lshl_add_u32 v9, v2, 12, v7')
    I('s_nop 7')
    I('s_nop 1')
    for tl, (mi, ni) in ((0, (0, 0)), (2, (1, 0)), (3, (1, 1)), (1, (0, 1))):
        for q in range(4):
            I('ds_write_b128 v8, %s offset:%d' % (vr(ACC + 32 * mi + 16 * ni + 4 * q, 4), tl * 4096 + q * 1024))
    I('v_add_u32 v7, 0x10000, v9')
    st.drain(vm=False)
    I('s_barrier')
    for w in range(4):
        for q in range(4):
            I('ds_read_b128 %s, v%d offset:%d' % (vr(ACC + 16 * w + 4 * q, 4), 9 if w < 2 else 7, (w % 2) * 32768 + q * 1024), ('R', w))
    st.need(vm='gb')
    unpack(I, 44, 20, 8)
    st.need(lg=('R', 1))
    for k in range(0, 16, 2):
        I('v_pk_add_f32 %s, %s, %s' % (vr(ACC + k, 2), vr(ACC + k, 2), vr(ACC + 16 + k, 2)))
    st.need(lg=('R', 3))
    for k in range(0, 16, 2):
        I('v_pk_add_f32 %s, %s, %s' % (vr(ACC + 32 + k, 2), vr(ACC + 32 + k, 2), vr(ACC + 48 + k, 2)))
    for k in range(0, 16, 2):
        I('v_pk_add_f32 %s, %s, %s' % (vr(ACC + k, 2), vr(ACC + k, 2), vr(ACC + 32 + k, 2)))
    for k in range(16):
        I('v_fmac_f32 v%d, v%d, v%d' % (44 + k, 28 + k, ACC + k))
    for k in range(8):
        I('v_cvt_pk_bf16_f32 v%d, v%d, v%d' % (20 + k, 44 + 2 * k, 45 + 2 * k))
    for t in range(2):
        I('buffer_store_dwordx4 %s, v19, s[24:27], 0 offen offset:%d' % (vr(20 + 4 * t, 4), 32 * t))
    stamps_end(st, opts, 'L_down_end', 20, 5, 6)
    p.label('L_down_end')
    I('s_endpgm')
    return finish(st, 'down')
```

```python
import sys, json
from asmlib import Prog
import attn, rest, big

HEADER = open('adaLN_cond__mha_block_cached__glu_gated_bilinear__prompt.s.ref').read().split('; Override launch')[0]

def kd(name, vgpr, acc, sgpr=102):
    return '''.p2align 6
.amdhsa_kernel %s
  .amdhsa_next_free_vgpr %d
  .amdhsa_next_free_sgpr %d
  .amdhsa_accum_offset %d
  .amdhsa_group_segment_fixed_size 0
  .amdhsa_kernarg_size 112
  .amdhsa_user_sgpr_count 2
  .amdhsa_user_sgpr_kernarg_segment_ptr 1
  .amdhsa_system_sgpr_workgroup_id_x 1
.end_amdhsa_kernel
''' % (name, vgpr, sgpr, acc)

def build(kernels):
    s = HEADER
    for name, prog, grid, block, lds, vgpr, acc in kernels:
        s += '; @launch kernel=%s grid=(%d,1,1) block=(%d,1,1) lds=%d\n' % (name, grid, block, lds)
    s += '.amdgcn_target "amdgcn-amd-amdhsa--gfx950"\n.text\n'
    seen = set()
    kernels = [k for k in kernels if not (k[0] in seen or seen.add(k[0]))]
    for name, prog, grid, block, lds, vgpr, acc in kernels:
        s += '.globl %s\n.p2align 8\n.type %s,@function\n' % (name, name)
        s += prog.text()
    s += '.section .rodata,"a"\n'
    for name, prog, grid, block, lds, vgpr, acc in kernels:
        s += kd(name, vgpr, acc)
    return s

if __name__ == '__main__':
    out = sys.argv[1]
    opts = json.loads(sys.argv[2]) if len(sys.argv) > 2 else {}
    allk = {
        'mod': lambda: ('mod_kernel', rest.gen_mod(opts), 192, 256, 1024, 64, 64),
        'h': lambda: ('h_kernel', rest.gen_h(opts), 256, 256, 0, 64, 64),
        'attn': lambda: ('attn_kernel', attn.gen_attn(opts), 256, 256, 131072 + 256, 512, 256),
        'big': lambda: ('big_kernel', big.gen_big(opts), 256, 256, 163840, 512, 256),
        'wo': lambda: ('wo_kernel', rest.gen_wo(opts), 256, 256, 131072, 192, 192),
        'ln2': lambda: ('ln2_kernel', rest.gen_ln2(opts), 256, 256, 256, 176, 176),
        'glu': lambda: ('glu_kernel', rest.gen_glu(opts), 256, 256, 4 * rest.GLU_SLOT, 328, 200),
        'down': lambda: ('down_kernel', rest.gen_down(opts), 256, 256, 131072, 288, 160),
    }
    def nop():
        p = Prog(); p.label('nop_kernel'); p.I('s_endpgm'); return p
    allk['nop'] = lambda: ('nop_kernel', nop(), 256, 256, 0, 8, 8)
    names = opts.get('kernels', 'mod,h,big').split(',')
    ks = [allk[n]() for n in names]
    open(out, 'w').write(build(ks))
```
